```python
import torch

def _softmax(x, axis=-1):
    return torch.softmax(x, dim=axis)
def _gelu(x):
    return torch.nn.functional.gelu(x, approximate="tanh")
def _silu(x):
    return torch.nn.functional.silu(x)
def _sigmoid(x):
    return torch.sigmoid(x)
def _layernorm(x, axis=-1, eps=1e-5):
    m = x.mean(dim=axis, keepdim=True)
    v = x.var(dim=axis, keepdim=True, unbiased=False)
    return (x - m) / torch.sqrt(v + eps)
def _scatter_add(tgt, idx, src, axis=0):
    return tgt.clone().index_add_(axis, idx, src)
def _segment_sum(src, seg, n):
    out = torch.zeros((n,) + src.shape[1:], dtype=src.dtype)
    return out.index_add_(0, seg, src)
def _pad(x, pw):
    flat = tuple(v for pair in reversed(pw) for v in pair)
    return torch.nn.functional.pad(x, flat)

kernel_name = 'gated_mix__gqa_block_cached__glu_gated_glu__decode'

def setup_inputs():

    _w = (lambda a: (lambda t: t.to(torch.bfloat16) if t.is_floating_point() else t)(torch.as_tensor(a)))
    def _A_setup():
        B, Sq, D = 8, 1, 512
        Hq, Hkv, Sk, Dh = 32, 8, 8192, 128
        assert Hq % Hkv == 0, (Hq, Hkv)
        return {
            "x": _w((lambda *s: torch.randn(*s, dtype=torch.bfloat16) * 0.05)(B, Sq, D)),
            "k_cache": _w((lambda *s: torch.randn(*s, dtype=torch.bfloat16) * 6.4)(B, Hkv, Sk, Dh)),
            "v_cache": _w((lambda *s: torch.randn(*s, dtype=torch.bfloat16) * 0.4)(B, Hkv, Sk, Dh)),
            "wq": _w((lambda *s: torch.randn(*s, dtype=torch.bfloat16) * 6.4)(D, Hq * Dh) * (D ** -0.5)),
            "wo": _w((lambda *s: torch.randn(*s, dtype=torch.bfloat16) * 0.4)(Hq * Dh, D) * ((Hq * Dh) ** -0.5)),
        }
    _A_in = _A_setup()

    def _B_setup():
        B, S, D, F = 8, 1, 512, 1792
        return {
            "x": _w((lambda *s: torch.randn(*s, dtype=torch.bfloat16) * 0.05)(B, S, D)),
            "w_gate": _w((lambda *s: torch.randn(*s, dtype=torch.bfloat16) * 0.4)(D, F)),
            "w_up": _w((lambda *s: torch.randn(*s, dtype=torch.bfloat16) * 0.05)(D, F)),
            "w_down": _w((lambda *s: torch.randn(*s, dtype=torch.bfloat16) * 0.05)(F, D)),
        }
    _B_in = _B_setup()

    return {
        "A_x": _A_in["x"],
        "A_k_cache": _A_in["k_cache"],
        "A_v_cache": _A_in["v_cache"],
        "A_wq": _A_in["wq"],
        "A_wo": _A_in["wo"],
        "B_x": _B_in["x"],
        "B_w_gate": _B_in["w_gate"],
        "B_w_up": _B_in["w_up"],
        "B_w_down": _B_in["w_down"],
        "gate_w": _w((lambda *s: torch.randn(*s, dtype=torch.bfloat16) * 0.05)(512) * 16.0),
    }

def reference(A_x, A_k_cache, A_v_cache, A_wq, A_wo, B_x, B_w_gate, B_w_up, B_w_down, gate_w):
    def _A_ref(x, k_cache, v_cache, wq, wo):
        B, Sq, D = x.shape
        Hq, Dh = 32, 128
        Hkv = k_cache.shape[1]
        rep = Hq // Hkv
        q = (lambda x, *d: x.permute(*d))((x @ wq).reshape(B, Sq, Hq, Dh), 0, 2, 1, 3)
        k = (lambda x, n, axis: torch.repeat_interleave(x, n, dim=axis))(k_cache, rep, axis=1)
        v = (lambda x, n, axis: torch.repeat_interleave(x, n, dim=axis))(v_cache, rep, axis=1)
        scores = torch.einsum("bhqd,bhkd->bhqk", q, k) * (Dh ** -0.5)
        p = _softmax(scores, axis=-1)
        o = torch.einsum("bhqk,bhkd->bhqd", p, v)
        return (lambda x, *d: x.permute(*d))(o, 0, 2, 1, 3).reshape(B, Sq, Hq * Dh) @ wo

    def _B_ref(x, w_gate, w_up, w_down):
        g = torch.einsum("bsd,df->bsf", x, w_gate)
        u = torch.einsum("bsd,df->bsf", x, w_up)
        h = _sigmoid(g) * u
        return torch.einsum("bsf,fd->bsd", h, w_down)

    x = A_x
    g = _sigmoid((x * gate_w).sum(-1, keepdims=True))
    a = _A_ref(x, A_k_cache, A_v_cache, A_wq, A_wo)
    b = _B_ref(x, B_w_gate, B_w_up, B_w_down)
    return g * a + (1 - g) * b
```

```python
import sys

KN = "gated_mix__gqa_block_cached__glu_gated_glu__decode_kernel"

HEADER_COMMENT = """; Kernarg layout for this problem (104 bytes, ptrs only, base s[0:1]):
"""

WS_Q = 0x0
WS_H = 0x10000
WS_PO = 0x20000
WS_PS = 0xA0000
WS_PA = 0xB0000
WS_SIZE = 0x150000
WS_DUMP = 0x1000000
WS_STAMP = 0x2000000

RING = 16384
LDS_A = 131072
LDS_B = 147456
LDS_Q = LDS_B + 0
LDS_OB = LDS_B + 2048
LDS_TOTAL = 163840


class E:
    def __init__(self):
        self.o = []
        self.q = []
        self.lab = 0

    def __call__(self, s):
        self.o.append(s)

    def label(self, name):
        self.o.append(name + ":")

    def newlab(self, p="L"):
        self.lab += 1
        return f"{p}_{self.lab}"

    def vm(self, tag, s):
        self.o.append(s)
        self.q.append(tag)

    def wait_tag(self, tag):
        if tag not in self.q:
            return
        i = self.q.index(tag)
        n = len(self.q) - 1 - i
        self.o.append(f"s_waitcnt vmcnt({min(n, 63)})")
        self.q = self.q[i + 1:]

    def wait_all(self):
        self.o.append("s_waitcnt vmcnt(0)")
        self.q = []

    def text(self):
        return "\n".join(("    " + x) if not x.endswith(":") else x for x in self.o)


def srd(e, d, lo, size):
    e(f"s_mov_b32 s{d}, s{lo}")
    e(f"s_and_b32 s{d+1}, s{lo+1}, 0xffff")
    e(f"s_mov_b32 s{d+2}, {size}")
    e(f"s_mov_b32 s{d+3}, 0x20000")


LOG2E = 0x3fb8aa3b
SCALE = 0x3db504f3
SENT = 0xffffffff


def gen(D=4, NB=32, LAG=20, wnt="nt", dump=None, stamps=False, spin=200000, poll_sleep=1):
    e = E()
    T_WQ = 2 * RING
    T_GU = 3 * RING
    T_WD = 0
    T_WO = LDS_A
    C_FLAG = LDS_B + 0
    C_CNT = LDS_B + 4
    C_GATE = LDS_B + 16
    L_Q = LDS_B + 1024
    L_ST = LDS_B + 2048
    L_WT = LDS_B + 2304
    L_OB = LDS_B + 4096
    OSTR = 576

    e("s_cmp_ge_u32 s2, 256")
    e("s_cbranch_scc1 L_done")
    if stamps:
        e("s_memrealtime s[96:97]")
    e("s_load_dwordx16 s[16:31], s[0:1], 0")
    e("s_load_dwordx8 s[32:39], s[0:1], 64")
    e("s_load_dwordx2 s[40:41], s[0:1], 96")
    e("v_lshrrev_b32 v1, 6, v0")
    e("v_and_b32 v0, 63, v0")
    e("v_readfirstlane_b32 s3, v1")
    e("v_and_b32 v50, 3, v0")
    e("v_bfe_u32 v51, v0, 2, 2")
    e("v_lshrrev_b32 v52, 4, v0")
    e("v_lshlrev_b32 v1, 4, v50")
    e("v_lshl_add_u32 v1, v51, 8, v1")
    e("v_lshl_add_u32 v1, v52, 6, v1")
    e("v_and_b32 v53, 15, v0")
    e("v_and_b32 v54, 1, v52")
    e("v_lshlrev_b32 v54, 1, v54")
    e("v_xor_b32 v53, v53, v54")
    for n in range(4):
        e(f"v_xor_b32 v55, {n*4}, v53")
        e(f"v_lshlrev_b32 v55, 4, v55")
        e(f"v_lshl_add_u32 v{2+n}, v52, 8, v55")
    e("v_lshl_add_u32 v55, v51, 2, v52")
    e("v_lshlrev_b32 v55, 8, v55")
    e("v_lshl_add_u32 v55, v50, 3, v55")
    e("s_lshl_b32 s80, s3, 14")
    e("v_add_u32 v55, s80, v55")
    e("v_and_b32 v56, 1, v52")
    e("v_lshl_add_u32 v56, v51, 1, v56")
    for dt in range(8):
        e(f"v_xor_b32 v57, {dt}, v56")
        e(f"v_lshl_add_u32 v{6+dt}, v57, 5, v55")
    e("s_waitcnt lgkmcnt(0)")
    srd(e, 4, 18, 128 << 20)
    srd(e, 8, 20, 128 << 20)
    srd(e, 12, 40, (WS_STAMP + (1 << 20)) if (dump or stamps) else WS_SIZE)
    e("s_lshl_b32 s81, s2, 19")
    e("s_lshl_b32 s82, s3, 12")
    e("s_add_u32 s81, s81, s82")
    e("s_mov_b64 vcc, 0")
    e("s_cmp_eq_u32 s3, 0")
    e("s_cbranch_scc1 L_helper")

    KREG = lambda n: 64 + 4 * (n % 48)
    state = dict(I=0)

    def pace():
        l = e.newlab("P")
        e(f"s_cbranch_vccnz {l}")
        e(f"s_waitcnt vmcnt({D-1})")
        e.label(l)

    def issue(paced=True):
        i = state["I"]
        state["I"] += 1
        if paced:
            pace()
        if i < 64:
            u, r = divmod(i, 4)
            if r == 0:
                e(f"s_add_u32 s83, s81, {u * 32768}")
            k = KREG(i)
            e.vm(("K", i), f"buffer_load_dwordx4 v[{k}:{k+3}], v1, s[4:7], s83 offen offset:{r*1024} nt")
        else:
            j = i - 64
            u, r = divmod(j, 4)
            if r == 0:
                e(f"s_add_u32 s84, s81, {u * 32768}")
                e(f"s_add_u32 m0, s80, {(u % 4) * 4096}")
                e("s_nop 0")
            e.vm(("V", j), f"buffer_load_dwordx4 v{2+r}, s[8:11], s84 offen offset:{r*1024} nt lds")

    for _ in range(D):
        issue(paced=False)
    e("s_barrier")
    e.label("L_streamA")
    while state["I"] < NB:
        issue()
    e(f"v_mov_b32 v50, {C_FLAG}")
    e(f"s_mov_b32 s85, {spin}")
    e.label("L_qwait")
    e("ds_read_b32 v51, v50")
    e("s_waitcnt lgkmcnt(0)")
    e("v_readfirstlane_b32 s86, v51")
    e("s_sub_u32 s85, s85, 1")
    e("s_cmp_eq_u32 s85, 0")
    e("s_cbranch_scc1 L_qok")
    e("s_cmp_lg_u32 s86, 0")
    e("s_cbranch_scc1 L_qok")
    e("s_sleep 2")
    e("s_branch L_qwait")
    e.label("L_qok")
    e("v_lshlrev_b32 v50, 4, v0")
    e(f"ds_read_b128 v[14:17], v50 offset:{L_Q - 0x20000}") if False else None
    e(f"v_add_u32 v50, {L_Q}, v50")
    e("ds_read_b128 v[14:17], v50")
    e("s_waitcnt lgkmcnt(0)")

    DB = [18, 22, 26, 30, 50, 54]
    DREG = lambda n: DB[n % 6]

    def mfma_k(n):
        e.wait_tag(("K", n))
        k = KREG(n); d = DREG(n)
        e(f"v_mfma_f32_16x16x32_bf16 v[{d}:{d+3}], v[{k}:{k+3}], v[14:17], 0")

    def dpp_k(n, j):
        if n < 0 or n > 63:
            return False
        d = DREG(n)
        blk, rem = divmod(n, 32)
        t, ee = divmod(rem, 8)
        R = 34 + blk * 8 + ee
        if j == 0:
            e(f"v_mov_b32_dpp v{R}, v{d+t} quad_perm:[0,1,2,3] row_mask:0xf bank_mask:{1<<t}")
        else:
            v = (t + j) % 4
            e(f"v_add_f32_dpp v{R}, v{d+v}, v{R} row_ror:{(4*(t-v)) % 16} row_mask:0xf bank_mask:{1<<t}")
        return True

    C = 0

    def consume():
        nonlocal C
        if C < 64:
            mfma_k(C)
        else:
            e("s_nop 0")
        for j in range(4):
            if not dpp_k(C - 2 - j, j):
                e("s_nop 0")
        C += 1

    while C < 64:
        I = state["I"]
        can = (I < 64 and I < C + 48) or (64 <= I < 80)
        if can:
            issue()
        consume()
        if C < 64 and (state["I"] - C > LAG or not can):
            consume()
    while state["I"] < 80:
        issue()
    while C < 70:
        consume()

    if dump == "S":
        e("s_lshl_b32 s86, s2, 3"); e("s_add_u32 s86, s86, s3"); e("s_lshl_b32 s86, s86, 12"); e(f"s_add_u32 s86, s86, {WS_DUMP}")
        e("v_lshlrev_b32 v50, 2, v0")
        for r in range(16):
            e.vm(("dump", r), f"buffer_store_dword v{34+r}, v50, s[12:15], s86 offen offset:{r*256}")

    e(f"s_mov_b32 s86, {SCALE}")
    e(f"s_mov_b32 s87, {LOG2E}")
    e("s_mov_b32 s88, 0xffff0000")
    for p in range(8):
        a, b = 34 + 2 * p, 35 + 2 * p
        t = 50 + (p % 4)
        e(f"v_cvt_pk_bf16_f32 v{t}, v{a}, v{b}")
        e(f"v_lshlrev_b32 v{a}, 16, v{t}")
        e(f"v_and_b32 v{b}, s88, v{t}")
        e(f"v_mul_f32 v{a}, s86, v{a}")
        e(f"v_mul_f32 v{b}, s86, v{b}")
        e(f"v_cvt_pk_bf16_f32 v{t}, v{a}, v{b}")
        e(f"v_lshlrev_b32 v{a}, 16, v{t}")
        e(f"v_and_b32 v{b}, s88, v{t}")
    e("v_max3_f32 v50, v34, v35, v36")
    e("v_max3_f32 v51, v37, v38, v39")
    e("v_max3_f32 v52, v40, v41, v42")
    e("v_max3_f32 v53, v43, v44, v45")
    e("v_max3_f32 v50, v50, v46, v47")
    e("v_max3_f32 v51, v51, v48, v49")
    e("v_max3_f32 v50, v50, v51, v52")
    e("v_max_f32 v50, v50, v53")

    def allred(op, r, t):
        e("s_nop 1")
        e(f"{op}_dpp v{r}, v{r}, v{r} row_ror:4 row_mask:0xf bank_mask:0xf")
        e("s_nop 1")
        e(f"{op}_dpp v{r}, v{r}, v{r} row_ror:8 row_mask:0xf bank_mask:0xf")
        e(f"v_mov_b32 v{t}, v{r}")
        e("s_nop 1")
        e(f"v_permlane16_swap_b32 v{r}, v{t}")
        e(f"{op} v{r}, v{r}, v{t}")
        e(f"v_mov_b32 v{t}, v{r}")
        e("s_nop 1")
        e(f"v_permlane32_swap_b32 v{r}, v{t}")
        e(f"{op} v{r}, v{r}, v{t}")

    allred("v_max_f32", 50, 51)
    e("v_mul_f32 v52, s87, v50")
    e("v_sub_f32 v52, 0, v52")
    for r in range(16):
        e(f"v_fma_f32 v{34+r}, v{34+r}, s87, v52")
    for r in range(16):
        e(f"v_exp_f32 v{34+r}, v{34+r}")
    e("s_nop 0")
    for p in range(8):
        e(f"v_cvt_pk_bf16_f32 v{18+p}, v{34+2*p}, v{35+2*p}")
    e("v_add_f32 v51, v34, v35")
    for r in range(2, 16):
        e(f"v_add_f32 v51, v51, v{34+r}")
    allred("v_add_f32", 51, 53)
    e("s_lshl_b32 s86, s3, 5")
    e(f"s_add_u32 s86, s86, {L_ST}")
    e("v_lshlrev_b32 v53, 3, v0")
    e("v_add_u32 v53, s86, v53")
    e(f"v_mov_b32 v54, {C_CNT}")
    e("v_mov_b32 v55, 1")
    e("s_mov_b64 exec, 0xf")
    e("ds_write_b64 v53, v[50:51]")
    e("s_waitcnt lgkmcnt(0)")
    e("s_mov_b64 exec, 1")
    e("ds_add_rtn_u32 v56, v54, v55")
    e("s_mov_b64 exec, -1")
    ACC = 64
    for r in range(32):
        e(f"v_mov_b32 v{ACC+r}, 0")
    e("s_waitcnt lgkmcnt(0)")
    e("v_readfirstlane_b32 s86, v56")
    e("s_cmp_lg_u32 s86, 7")
    e("s_cbranch_scc1 L_nostats")
    e("v_and_b32 v53, 31, v0")
    e("v_lshlrev_b32 v53, 3, v53")
    e(f"v_add_u32 v53, {L_ST}, v53")
    e("ds_read_b64 v[54:55], v53")
    e("s_waitcnt lgkmcnt(0)")
    e("v_mov_b32 v56, v54")
    allred("v_max_f32", 56, 57)
    e("v_sub_f32 v57, v54, v56")
    e("v_mul_f32 v57, s87, v57")
    e("v_exp_f32 v57, v57")
    e("s_nop 0")
    e("v_mul_f32 v58, v57, v55")
    allred("v_add_f32", 58, 59)
    e("v_mul_f32 v58, 0.5, v58")
    e("v_and_b32 v59, 3, v0")
    e("v_lshlrev_b32 v59, 5, v59")
    e("v_bfe_u32 v60, v0, 2, 3")
    e("v_lshl_add_u32 v59, v60, 2, v59")
    e(f"v_add_u32 v59, {L_WT}, v59")
    e("ds_write_b32 v59, v57")
    e("s_bfe_u32 s86, s2, 0x30002")
    e("s_lshl_b32 s86, s86, 10")
    e("s_lshr_b32 s88, s2, 5")
    e("s_lshl_b32 s88, s88, 5")
    e("s_add_u32 s86, s86, s88")
    e("s_and_b32 s88, s2, 3")
    e("s_lshl_b32 s88, s88, 3")
    e("s_add_u32 s86, s86, s88")
    e(f"s_add_u32 s86, s86, {WS_PS}")
    e("v_lshlrev_b32 v59, 8, v0")
    e("v_mov_b32 v57, v58")
    e("s_mov_b64 exec, 0xf")
    e("buffer_store_dwordx2 v[56:57], v59, s[12:15], s86 offen sc1")
    e("s_mov_b64 exec, -1")
    e.label("L_nostats")

    AREG = lambda k, dt: 96 + (k % 2) * 32 + dt * 4
    BT = lambda k: 26 + (k % 2) * 4
    for u in range(16):
        k, hf = divmod(u, 2)
        blk, t = divmod(k, 4)
        if hf == 0:
            if t != 0:
                for r in range(4):
                    e(f"v_mov_b32_dpp v{BT(k)+r}, v{18+blk*4+r} row_ror:{(16-4*t) % 16} row_mask:0xf bank_mask:0xf")
        e.wait_tag(("V", 4 * u + 3))
        for dt in range(8):
            a = AREG(k, dt) + 2 * hf
            e(f"ds_read_b64_tr_b16 v[{a}:{a+1}], v{6+dt} offset:{(u % 4) * 4096}")
        if u + 4 < 16:
            e("s_waitcnt lgkmcnt(0)")
            for _ in range(4):
                issue()
        if hf == 1:
            b = (18 + blk * 4) if t == 0 else BT(k)
            for dt in range(8):
                a = AREG(k, dt)
                if u + 4 >= 16:
                    e(f"s_waitcnt lgkmcnt({7-dt})")
                e(f"v_mfma_f32_16x16x32_bf16 v[{ACC+4*dt}:{ACC+4*dt+3}], v[{a}:{a+3}], v[{b}:{b+3}], v[{ACC+4*dt}:{ACC+4*dt+3}]")
    assert state["I"] == 128
    e("v_and_b32 v50, 3, v0")
    e(f"v_mul_u32_u24 v50, {OSTR}, v50")
    e("v_lshrrev_b32 v51, 4, v0")
    e("v_lshl_add_u32 v50, v51, 4, v50")
    e("v_add_u32 v50, s80, v50")
    e("s_mov_b32 s86, 0x000f000f")
    e("s_mov_b32 s87, 0x000f000f")
    e("s_mov_b64 exec, s[86:87]")
    e("s_nop 1")
    for dt in range(8):
        e(f"ds_write_b128 v50, v[{ACC+4*dt}:{ACC+4*dt+3}] offset:{dt*64}")
    e("s_mov_b64 exec, -1")
    e("s_waitcnt lgkmcnt(0)")
    if stamps:
        e("s_memrealtime s[98:99]")
    e("s_barrier")
    e("s_cmp_ge_u32 s3, 4")
    e("s_cbranch_scc1 L_hop1")
    e("s_cmp_ge_u32 s3, 2")
    e("s_cbranch_scc1 L_fin")
    e("v_lshrrev_b32 v50, 5, v0")
    e("s_lshl_b32 s86, s3, 1")
    e("v_add_u32 v50, s86, v50")
    e("v_and_b32 v51, 31, v0")
    e(f"v_mul_u32_u24 v52, {OSTR}, v50")
    e("v_lshl_add_u32 v52, v51, 4, v52")
    e("v_lshlrev_b32 v53, 5, v50")
    e(f"v_add_u32 v53, {L_WT}, v53")
    e("v_add_u32 v54, 0x10000, v52")
    e("ds_read_b128 v[96:99], v53")
    e("ds_read_b128 v[100:103], v53 offset:16")
    for w in range(8):
        e(f"ds_read_b128 v[{64+4*w}:{67+4*w}], v{52 if w < 4 else 54} offset:{(w % 4) * RING}")
    e("s_bfe_u32 s86, s2, 0x30002")
    e("s_lshl_b32 s86, s86, 16")
    e("s_lshr_b32 s88, s2, 5")
    e("s_lshl_b32 s88, s88, 11")
    e("s_add_u32 s86, s86, s88")
    e("s_and_b32 s88, s2, 3")
    e("s_lshl_b32 s88, s88, 9")
    e("s_add_u32 s86, s86, s88")
    e(f"s_add_u32 s86, s86, {WS_PO}")
    e("v_lshlrev_b32 v55, 14, v50")
    e("v_lshl_add_u32 v55, v51, 4, v55")
    e("s_waitcnt lgkmcnt(7)")
    for c in range(4):
        e(f"v_mul_f32 v{104+c}, v96, v{64+c}")
    for w in range(1, 8):
        e(f"s_waitcnt lgkmcnt({7-w})")
        for c in range(4):
            e(f"v_fmac_f32 v{104+c}, v{96+w}, v{64+4*w+c}")
    e("buffer_store_dwordx4 v[104:107], v55, s[12:15], s86 offen sc1")
    e("s_branch L_fin")

    e.label("L_hop1")
    e("s_sub_u32 s89, s3, 4")
    e("s_lshr_b32 s90, s2, 3")
    e("v_lshrrev_b32 v50, 5, v0")
    e("s_lshl_b32 s86, s89, 1")
    e("v_add_u32 v50, s86, v50")
    e("v_and_b32 v51, 31, v0")
    e("v_lshlrev_b32 v52, 5, v50")
    e("s_lshl_b32 s91, s90, 8")
    e(f"s_add_u32 s91, s91, {WS_PS}")
    e("v_lshlrev_b32 v53, 11, v50")
    e("v_lshl_add_u32 v53, v51, 4, v53")
    e("s_lshl_b32 s92, s90, 14")
    e(f"s_add_u32 s92, s92, {WS_PO}")
    e(f"s_mov_b32 s85, {spin}")
    e.label("L_h1s")
    e("buffer_load_dwordx4 v[64:67], v52, s[12:15], s91 offen sc1")
    e("buffer_load_dwordx4 v[68:71], v52, s[12:15], s91 offen offset:16 sc1")
    for s in range(4):
        e(f"buffer_load_dwordx4 v[{72+4*s}:{75+4*s}], v53, s[12:15], s92 offen offset:{s*512} sc1")
    e("v_lshrrev_b32 v54, 4, v0")
    e("v_bfe_u32 v55, v0, 2, 2")
    e("v_lshl_add_u32 v54, v54, 3, v55")
    e("v_lshlrev_b32 v54, 7, v54")
    e("v_and_b32 v55, 3, v0")
    e("v_lshl_add_u32 v54, v55, 3, v54")
    e("s_lshl_b32 s86, s89, 5")
    e(f"s_add_u32 s86, s86, {T_WO}")
    e("v_add_u32 v54, s86, v54")
    for kk in range(4):
        for hf in range(2):
            a = 160 + kk * 4 + hf * 2
            e(f"ds_read_b64_tr_b16 v[{a}:{a+1}], v54 offset:{(32*kk+4*hf)*128}")
    e("s_waitcnt vmcnt(4)")
    e("v_max3_u32 v56, v64, v65, v66")
    e("v_max3_u32 v56, v56, v67, v68")
    e("v_max3_u32 v56, v56, v69, v70")
    e("v_max_u32 v56, v56, v71")
    e("v_cmp_eq_u32 s[86:87], -1, v56")
    e("s_sub_u32 s85, s85, 1")
    e("s_cmp_eq_u32 s85, 0")
    e("s_cbranch_scc1 L_h1s_ok")
    e("s_cmp_eq_u64 s[86:87], 0")
    e("s_cbranch_scc1 L_h1s_ok")
    e("s_waitcnt vmcnt(0) lgkmcnt(0)")
    e(f"s_sleep {poll_sleep}")
    e("s_branch L_h1s")
    e.label("L_h1s_ok")
    e(f"s_mov_b32 s87, {LOG2E}")
    e("v_max3_f32 v56, v64, v66, v68")
    e("v_max_f32 v56, v56, v70")
    for s in range(4):
        e(f"v_sub_f32 v{64+2*s}, v{64+2*s}, v56")
        e(f"v_mul_f32 v{64+2*s}, s87, v{64+2*s}")
        e(f"v_exp_f32 v{64+2*s}, v{64+2*s}")
    e("s_nop 0")
    e("v_mul_f32 v57, v64, v65")
    for s in range(1, 4):
        e(f"v_fmac_f32 v57, v{64+2*s}, v{65+2*s}")
    e("v_rcp_f32 v57, v57")
    e("s_nop 0")
    for s in range(4):
        e(f"v_mul_f32 v{64+2*s}, v{64+2*s}, v57")
    e("s_branch L_h1o_chk")
    e.label("L_h1o")
    e(f"s_sleep {poll_sleep}")
    for s in range(4):
        e(f"buffer_load_dwordx4 v[{72+4*s}:{75+4*s}], v53, s[12:15], s92 offen offset:{s*512} sc1")
    e.label("L_h1o_chk")
    e("s_waitcnt vmcnt(0)")
    e("v_max3_u32 v56, v72, v73, v74")
    e("v_max3_u32 v57, v75, v76, v77")
    e("v_max3_u32 v58, v78, v79, v80")
    e("v_max3_u32 v59, v81, v82, v83")
    e("v_max3_u32 v56, v56, v84, v85")
    e("v_max3_u32 v57, v57, v86, v87")
    e("v_max3_u32 v56, v56, v57, v58")
    e("v_max_u32 v56, v56, v59")
    e("v_cmp_eq_u32 s[86:87], -1, v56")
    e("s_sub_u32 s85, s85, 1")
    e("s_cmp_eq_u32 s85, 0")
    e("s_cbranch_scc1 L_h1o_ok")
    e("s_cmp_eq_u64 s[86:87], 0")
    e("s_cbranch_scc0 L_h1o")
    e.label("L_h1o_ok")
    for c in range(4):
        e(f"v_mul_f32 v{88+c}, v64, v{72+c}")
    for s in range(1, 4):
        for c in range(4):
            e(f"v_fmac_f32 v{88+c}, v{64+2*s}, v{72+4*s+c}")
    e("v_cvt_pk_bf16_f32 v88, v88, v89")
    e("v_cvt_pk_bf16_f32 v89, v90, v91")
    e("v_mul_u32_u24 v56, 272, v50")
    e("v_lshl_add_u32 v56, v51, 3, v56")
    e(f"v_add_u32 v56, {L_OB}, v56")
    e("ds_write_b64 v56, v[88:89]")
    e("v_and_b32 v57, 7, v0")
    e("v_mul_u32_u24 v57, 272, v57")
    e("v_lshrrev_b32 v58, 4, v0")
    e("v_lshl_add_u32 v57, v58, 4, v57")
    e(f"v_add_u32 v57, {L_OB}, v57")
    e("v_and_b32 v59, 15, v0")
    e("v_mul_u32_u24 v59, 81920, v59")
    e("v_lshl_add_u32 v59, v58, 4, v59")
    e("s_and_b32 s86, s2, 7")
    e("s_lshl_b32 s86, s86, 2")
    e("s_add_u32 s86, s86, s89")
    e("s_mul_i32 s86, s86, 2560")
    e("s_lshl_b32 s88, s90, 6")
    e("s_add_u32 s86, s86, s88")
    e(f"s_add_u32 s86, s86, {WS_PA}")
    e("s_waitcnt lgkmcnt(0)")
    e("s_barrier")
    for kk in range(4):
        e(f"ds_read_b128 v[{72+4*kk}:{75+4*kk}], v57 offset:{kk*64}")
    for kk in range(4):
        e(f"s_waitcnt lgkmcnt({3-kk})")
        c = "0" if kk == 0 else "v[88:91]"
        e(f"v_mfma_f32_16x16x32_bf16 v[88:91], v[{160+4*kk}:{163+4*kk}], v[{72+4*kk}:{75+4*kk}], {c}")
    e("s_mov_b32 s92, 0x00ff00ff")
    e("s_mov_b32 s93, 0x00ff00ff")
    e("s_mov_b64 exec, s[92:93]")
    e("s_nop 5")
    e("buffer_store_dwordx4 v[88:91], v59, s[12:15], s86 offen sc1")
    e("s_mov_b64 exec, -1")
    e("s_cmp_lg_u32 s3, 4")
    e("s_cbranch_scc1 L_fin")

    e("s_mul_i32 s86, s2, 2560")
    e(f"s_add_u32 s86, s86, {WS_PA}")
    e("v_lshlrev_b32 v50, 4, v0")
    e("v_and_b32 v51, 31, v0")
    e("v_lshlrev_b32 v51, 4, v51")
    e(f"v_mov_b32 v52, {C_GATE}")
    e("ds_read_b32 v53, v52")
    e(f"s_mov_b32 s85, {spin}")
    e("s_branch L_h2_ld")
    e.label("L_h2")
    e(f"s_sleep {poll_sleep}")
    e.label("L_h2_ld")
    e("buffer_load_dwordx4 v[64:67], v50, s[12:15], s86 offen sc1")
    e("buffer_load_dwordx4 v[68:71], v50, s[12:15], s86 offen offset:1024 sc1")
    e("buffer_load_dwordx4 v[72:75], v51, s[12:15], s86 offen offset:2048 sc1")
    e("s_waitcnt vmcnt(0)")
    e("v_max3_u32 v56, v64, v65, v66")
    e("v_max3_u32 v57, v67, v68, v69")
    e("v_max3_u32 v58, v70, v71, v72")
    e("v_max3_u32 v56, v56, v73, v74")
    e("v_max3_u32 v57, v57, v58, v75")
    e("v_max_u32 v56, v56, v57")
    e("v_cmp_eq_u32 s[88:89], -1, v56")
    e("s_sub_u32 s85, s85, 1")
    e("s_cmp_eq_u32 s85, 0")
    e("s_cbranch_scc1 L_h2_ok")
    e("s_cmp_eq_u64 s[88:89], 0")
    e("s_cbranch_scc0 L_h2")
    e.label("L_h2_ok")
    for c in range(4):
        e(f"v_add_f32 v{64+c}, v{64+c}, v{68+c}")
    regs = [64, 65, 66, 67, 72, 73, 74, 75]
    e("s_nop 1")
    for r in regs:
        e(f"v_add_f32_dpp v{r}, v{r}, v{r} row_ror:4 row_mask:0xf bank_mask:0xf")
    for r in regs:
        e(f"v_add_f32_dpp v{r}, v{r}, v{r} row_ror:8 row_mask:0xf bank_mask:0xf")
    for r in regs:
        e(f"v_mov_b32 v{r+12}, v{r}")
    e("s_nop 1")
    for r in regs:
        e(f"v_permlane16_swap_b32 v{r}, v{r+12}")
    for r in regs:
        e(f"v_add_f32 v{r}, v{r}, v{r+12}")
    for r in regs[:4]:
        e(f"v_mov_b32 v{r+12}, v{r}")
    e("s_nop 1")
    for r in regs[:4]:
        e(f"v_permlane32_swap_b32 v{r}, v{r+12}")
    for r in regs[:4]:
        e(f"v_add_f32 v{r}, v{r}, v{r+12}")
    e("s_mov_b32 s88, 0xffff0000")
    e("s_waitcnt lgkmcnt(0)")
    e("v_sub_f32 v54, 1.0, v53")
    e("v_cvt_pk_bf16_f32 v54, v54, v54")
    e("v_and_b32 v54, s88, v54")

    def rnd2(a, b, t):
        e(f"v_cvt_pk_bf16_f32 v{t}, v{a}, v{b}")
        e(f"v_lshlrev_b32 v{a}, 16, v{t}")
        e(f"v_and_b32 v{b}, s88, v{t}")
    rnd2(64, 65, 56); rnd2(66, 67, 57); rnd2(72, 73, 58); rnd2(74, 75, 59)
    for c in range(4):
        e(f"v_mul_f32 v{64+c}, v53, v{64+c}")
        e(f"v_mul_f32 v{72+c}, v54, v{72+c}")
    rnd2(64, 65, 56); rnd2(66, 67, 57); rnd2(72, 73, 58); rnd2(74, 75, 59)
    for c in range(4):
        e(f"v_add_f32 v{64+c}, v{64+c}, v{72+c}")
    e("v_cvt_pk_bf16_f32 v64, v64, v65")
    e("v_cvt_pk_bf16_f32 v65, v66, v67")
    srd(e, 72, 36, 8192)
    e("s_lshl_b32 s86, s2, 5")
    e("v_lshlrev_b32 v50, 3, v0")
    e("s_mov_b64 exec, 0xf")
    e("buffer_store_dwordx2 v[64:65], v50, s[72:75], s86 offen")
    e("s_mov_b64 exec, -1")
    e.label("L_fin")
    if stamps:
        e("s_memrealtime s[100:101]")
        e("s_waitcnt lgkmcnt(0)")
        e("s_lshl_b32 s86, s2, 3"); e("s_add_u32 s86, s86, s3"); e("s_lshl_b32 s86, s86, 5"); e(f"s_add_u32 s86, s86, {WS_STAMP}")
        e("v_mov_b32 v64, s96"); e("v_mov_b32 v65, s94"); e("v_mov_b32 v66, s95"); e("v_mov_b32 v67, s98")
        e("v_mov_b32 v68, s100"); e("v_mov_b32 v69, 0"); e("v_mov_b32 v70, 0"); e("v_mov_b32 v71, 0"); e("v_mov_b32 v50, 0")
        e("s_mov_b64 exec, 1")
        e("buffer_store_dwordx4 v[64:67], v50, s[12:15], s86 offen")
        e("buffer_store_dwordx4 v[68:71], v50, s[12:15], s86 offen offset:16")
    e("s_endpgm")

    h = E()
    h.lab = 10000
    h.label("L_helper")
    h("s_mov_b64 vcc, -1")
    h(f"v_mov_b32 v50, {C_FLAG}")
    h("v_mov_b32 v52, 0"); h("v_mov_b32 v53, 0")
    h("ds_write_b64 v50, v[52:53]")
    srd(h, 44, 16, 8192)
    srd(h, 48, 22, 4 << 20)
    srd(h, 52, 28, 512 * 3584)
    srd(h, 56, 30, 512 * 3584)
    srd(h, 60, 32, 1792 * 1024)
    srd(h, 64, 24, 4 << 20)
    srd(h, 68, 34, 1024)
    srd(h, 76, 38, 256)
    h("s_and_b32 s89, s2, 7")
    h("s_lshr_b32 s90, s2, 3")
    h("v_lshrrev_b32 v50, 1, v0")
    h("v_and_b32 v51, 1, v0")
    h("v_lshlrev_b32 v51, 4, v51")
    h("v_lshl_add_u32 v52, v50, 13, v51")
    h("v_lshl_add_u32 v53, v50, 10, v51")
    h("s_lshl_b32 s86, s89, 10")
    h("s_lshl_b32 s88, s90, 5")
    h("s_add_u32 s91, s86, s88")
    h("s_mov_b32 s86, s91")
    for i in range(16):
        h(f"s_mov_b32 m0, {T_WQ + i*1024}")
        if i:
            h("s_add_u32 s86, s86, 0x40000")
        else:
            h("s_nop 0")
        h.vm(("wq", i), f"buffer_load_dwordx4 v52, s[48:51], s86 offen {wnt} lds")
    h("v_and_b32 v54, 7, v0")
    h("v_lshlrev_b32 v54, 10, v54")
    h("v_lshrrev_b32 v55, 4, v0")
    h("v_lshl_add_u32 v54, v55, 4, v54")
    XR = 64
    for kk in range(16):
        h.vm(("x", kk), f"buffer_load_dwordx4 v[{XR+4*kk}:{XR+4*kk+3}], v54, s[44:47], 0 offen offset:{kk*64}")
    h("s_waitcnt lgkmcnt(0)")
    h("s_barrier")
    for r in range(4):
        h(f"v_mov_b32 v{56+r}, -1")
    h("s_bfe_u32 s86, s2, 0x30002")
    h("s_lshl_b32 s92, s86, 16")
    h("s_lshr_b32 s88, s2, 5")
    h("s_lshl_b32 s93, s88, 11")
    h("s_add_u32 s92, s92, s93")
    h("s_and_b32 s87, s2, 3")
    h("s_lshl_b32 s93, s87, 9")
    h("s_add_u32 s92, s92, s93")
    h(f"s_add_u32 s92, s92, {WS_PO}")
    h("v_lshrrev_b32 v60, 5, v0")
    h("v_lshlrev_b32 v60, 14, v60")
    h("v_and_b32 v61, 31, v0")
    h("v_lshl_add_u32 v60, v61, 4, v60")
    h.vm("c0", "buffer_store_dwordx4 v[56:59], v60, s[12:15], s92 offen sc1")
    h("s_add_u32 s92, s92, 0x8000")
    h.vm("c1", "buffer_store_dwordx4 v[56:59], v60, s[12:15], s92 offen sc1")
    h("s_lshl_b32 s92, s86, 10")
    h("s_lshl_b32 s93, s88, 5")
    h("s_add_u32 s92, s92, s93")
    h("s_lshl_b32 s93, s87, 3")
    h("s_add_u32 s92, s92, s93")
    h(f"s_add_u32 s92, s92, {WS_PS}")
    h("v_lshlrev_b32 v60, 8, v0")
    h("s_mov_b64 exec, 0xf")
    h.vm("c2", "buffer_store_dwordx2 v[56:57], v60, s[12:15], s92 offen sc1")
    h("s_mov_b64 exec, -1")
    h("v_lshrrev_b32 v60, 3, v0")
    h("v_mul_u32_u24 v60, 81920, v60")
    h("v_bfe_u32 v61, v0, 2, 1")
    h("v_mul_u32_u24 v61, 2560, v61")
    h("v_add_u32 v60, v60, v61")
    h("v_and_b32 v61, 3, v0")
    h("v_lshl_add_u32 v60, v61, 4, v60")
    h("s_mul_i32 s92, s89, 10240")
    h("s_lshl_b32 s93, s90, 6")
    h("s_add_u32 s92, s92, s93")
    h(f"s_add_u32 s92, s92, {WS_PA}")
    h.vm("c3", "buffer_store_dwordx4 v[56:59], v60, s[12:15], s92 offen sc1")
    h("s_add_u32 s92, s92, 5120")
    h.vm("c4", "buffer_store_dwordx4 v[56:59], v60, s[12:15], s92 offen sc1")
    h("v_and_b32 v62, 15, v0")
    h("v_mul_u32_u24 v62, 81920, v62")
    h("v_lshl_add_u32 v62, v55, 4, v62")
    h("s_mul_i32 s43, s90, 2560")
    h("s_lshl_b32 s93, s89, 6")
    h("s_add_u32 s43, s43, s93")
    h(f"s_add_u32 s43, s43, {WS_PA + 2048}")
    h("s_mov_b32 s92, 0x00ff00ff")
    h("s_mov_b32 s93, 0x00ff00ff")
    h("s_mov_b64 exec, s[92:93]")
    h.vm("c5", "buffer_store_dwordx4 v[56:59], v62, s[12:15], s43 offen sc1")
    h("s_mov_b64 exec, -1")
    h("s_min_u32 s92, s90, 27")
    h("s_mul_i32 s93, s89, 28")
    h("s_add_u32 s92, s92, s93")
    h("s_lshl_b32 s42, s92, 4")
    h("v_mul_u32_u24 v60, 3584, v0")
    h("s_mov_b32 s86, s42")
    for i in range(8):
        h(f"s_mov_b32 m0, {T_GU + i*1024}")
        if i:
            h(f"s_add_u32 s86, s86, {64*3584}")
        else:
            h("s_nop 0")
        h.vm(("wg", i), f"buffer_load_dwordx4 v60, s[52:55], s86 offen {wnt} lds")
        h(f"s_mov_b32 m0, {T_GU + 8192 + i*1024}")
        h("s_nop 0")
        h.vm(("wu", i), f"buffer_load_dwordx4 v60, s[56:59], s86 offen {wnt} lds")
    h(f"s_mul_i32 s86, s89, {224*1024}")
    h("s_lshl_b32 s93, s90, 5")
    h("s_add_u32 s86, s86, s93")
    for i in range(7):
        h(f"s_mov_b32 m0, {T_WD + i*1024}")
        if i:
            h("s_add_u32 s86, s86, 0x8000")
        else:
            h("s_nop 0")
        h.vm(("wd", i), f"buffer_load_dwordx4 v53, s[60:63], s86 offen {wnt} lds")
    h("v_lshlrev_b32 v61, 4, v0")
    h("s_lshr_b32 s86, s2, 5")
    h("s_lshl_b32 s86, s86, 10")
    h.vm("gx", "buffer_load_dwordx4 v[200:203], v61, s[44:47], s86 offen")
    h.vm("gw", "buffer_load_dwordx4 v[204:207], v61, s[68:71], 0 offen")

    h("v_bfe_u32 v50, v0, 2, 2")
    h("v_lshl_add_u32 v50, v55, 3, v50")
    h("v_and_b32 v51, 3, v0")
    h("v_lshlrev_b32 v56, 5, v50")
    h("v_lshl_add_u32 v56, v51, 3, v56")
    h(f"v_add_u32 v57, {T_WQ}, v56")
    h("v_lshlrev_b32 v58, 4, v50")
    h("v_and_b32 v59, 1, v51")
    h("v_lshl_add_u32 v58, v59, 3, v58")
    h("v_lshrrev_b32 v59, 1, v51")
    h("v_lshl_add_u32 v58, v59, 13, v58")
    h(f"v_add_u32 v58, {T_GU}, v58")

    def proj(addr, rowbytes, nk, breg, dreg, ar=128):
        for kk0 in range(0, nk, 4):
            ks = list(range(kk0, min(kk0 + 4, nk)))
            for kk in ks:
                for hf in range(2):
                    a = ar + (kk % 8) * 4 + hf * 2
                    h(f"ds_read_b64_tr_b16 v[{a}:{a+1}], v{addr} offset:{(32*kk+4*hf)*rowbytes}")
            for idx, kk in enumerate(ks):
                h(f"s_waitcnt lgkmcnt({2*(len(ks)-1-idx)})")
                a = ar + (kk % 8) * 4
                c = "0" if kk == 0 else f"v[{dreg}:{dreg+3}]"
                h(f"v_mfma_f32_16x16x32_bf16 v[{dreg}:{dreg+3}], v[{a}:{a+3}], v[{breg+4*kk}:{breg+4*kk+3}], {c}")

    h.wait_tag(("x", 15))
    proj(57, 32, 16, XR, 20)
    h("v_and_b32 v59, 15, v0")
    h("v_lshlrev_b32 v63, 13, v59")
    h("v_lshl_add_u32 v63, v55, 3, v63")
    h("s_mov_b32 s92, 0x00ff00ff")
    h("s_mov_b32 s93, 0x00ff00ff")
    h("s_nop 3")
    h("v_cvt_pk_bf16_f32 v20, v20, v21")
    h("v_cvt_pk_bf16_f32 v21, v22, v23")
    h("s_mov_b64 exec, s[92:93]")
    h.vm("qst", f"buffer_store_dwordx2 v[20:21], v63, s[12:15], s91 offen sc1")
    h("s_mov_b64 exec, -1")
    h.wait_tag(("wu", 7))
    proj(58, 16, 16, XR, 24)
    h("s_mov_b32 s88, 0xffff0000")
    h(f"s_mov_b32 s87, {LOG2E}")
    h("s_nop 5")
    h("v_cvt_pk_bf16_f32 v28, v24, v25")
    h("v_cvt_pk_bf16_f32 v29, v26, v27")
    h("v_mov_b32 v30, v28")
    h("v_mov_b32 v31, v29")
    h("s_nop 1")
    h("v_permlane32_swap_b32 v28, v30")
    h("v_permlane32_swap_b32 v29, v31")
    h("v_lshlrev_b32 v24, 16, v28"); h("v_and_b32 v25, s88, v28")
    h("v_lshlrev_b32 v26, 16, v29"); h("v_and_b32 v27, s88, v29")
    h("v_lshlrev_b32 v32, 16, v30"); h("v_and_b32 v33, s88, v30")
    h("v_lshlrev_b32 v34, 16, v31"); h("v_and_b32 v35, s88, v31")
    for c in range(4):
        h(f"v_mul_f32 v{24+c}, s87, v{24+c}")
        h(f"v_sub_f32 v{24+c}, 0, v{24+c}")
        h(f"v_exp_f32 v{24+c}, v{24+c}")
    h("s_nop 0")
    for c in range(4):
        h(f"v_add_f32 v{24+c}, 1.0, v{24+c}")
    for c in range(4):
        h(f"v_rcp_f32 v{24+c}, v{24+c}")
    h("s_nop 0")
    h("v_cvt_pk_bf16_f32 v28, v24, v25")
    h("v_cvt_pk_bf16_f32 v29, v26, v27")
    h("v_lshlrev_b32 v24, 16, v28"); h("v_and_b32 v25, s88, v28")
    h("v_lshlrev_b32 v26, 16, v29"); h("v_and_b32 v27, s88, v29")
    for c in range(4):
        h(f"v_mul_f32 v{24+c}, v{24+c}, v{32+c}")
    h("v_cvt_pk_bf16_f32 v28, v24, v25")
    h("v_cvt_pk_bf16_f32 v29, v26, v27")
    h("v_mul_u32_u24 v63, 3584, v59")
    h("v_lshl_add_u32 v63, v55, 3, v63")
    h(f"s_add_u32 s86, s42, {WS_H}")
    h("s_cmp_lt_u32 s90, 28")
    h("s_cselect_b32 s92, 0x00ff00ff, 0")
    h("s_mov_b32 s93, 0")
    h("s_cbranch_scc0 L_noh")
    h("s_mov_b64 exec, s[92:93]")
    h("buffer_store_dwordx2 v[28:29], v63, s[12:15], s86 offen sc1")
    h("s_mov_b64 exec, -1")
    h.label("L_noh")
    h("v_mov_b32 v36, 1")
    h("s_and_b32 s86, s89, 3")
    h("s_lshr_b32 s93, s89, 2")
    h("s_lshl_b32 s93, s93, 5")
    h("s_add_u32 s86, s86, s93")
    h("s_lshl_b32 s86, s86, 2")
    h("v_mov_b32 v37, s86")
    h("s_waitcnt vmcnt(0)")
    h.q = []
    h("s_mov_b64 exec, 1")
    h("buffer_atomic_add v36, v37, s[76:79], 0 offen")
    h("s_cmp_lt_u32 s90, 28")
    h("s_cbranch_scc0 L_noh2")
    h("buffer_atomic_add v36, v37, s[76:79], 0 offen offset:32")
    h.label("L_noh2")
    h("s_mov_b64 exec, -1")
    h("v_lshrrev_b32 v38, 3, v0")
    h("v_and_b32 v39, 7, v0")
    h("v_lshlrev_b32 v39, 4, v39")
    h("v_lshl_add_u32 v38, v38, 10, v39")
    h("s_lshl_b32 s86, s90, 17")
    h("s_lshl_b32 s93, s89, 7")
    h("s_add_u32 s86, s86, s93")
    for i in range(16):
        h(f"s_mov_b32 m0, {T_WO + i*1024}")
        if i:
            h("s_add_u32 s86, s86, 0x2000")
        else:
            h("s_nop 0")
        h(f"buffer_load_dwordx4 v38, s[64:67], s86 offen {wnt} lds")
    for c in range(4):
        h(f"v_lshlrev_b32 v{208+2*c}, 16, v{200+c}"); h(f"v_and_b32 v{209+2*c}, s88, v{200+c}")
        h(f"v_lshlrev_b32 v{216+2*c}, 16, v{204+c}"); h(f"v_and_b32 v{217+2*c}, s88, v{204+c}")
    for c in range(8):
        h(f"v_mul_f32 v{208+c}, v{208+c}, v{216+c}")
    for c in range(4):
        h(f"v_cvt_pk_bf16_f32 v{216+c}, v{208+2*c}, v{209+2*c}")
        h(f"v_lshlrev_b32 v{208+2*c}, 16, v{216+c}"); h(f"v_and_b32 v{209+2*c}, s88, v{216+c}")
    for c in range(1, 8):
        h(f"v_add_f32 v208, v208, v{208+c}")
    h("s_nop 1")
    h("v_add_f32_dpp v208, v208, v208 quad_perm:[1,0,3,2] row_mask:0xf bank_mask:0xf")
    h("s_nop 1")
    h("v_add_f32_dpp v208, v208, v208 quad_perm:[2,3,0,1] row_mask:0xf bank_mask:0xf")
    def allred_h(op, r, t):
        h("s_nop 1")
        h(f"{op}_dpp v{r}, v{r}, v{r} row_ror:4 row_mask:0xf bank_mask:0xf")
        h("s_nop 1")
        h(f"{op}_dpp v{r}, v{r}, v{r} row_ror:8 row_mask:0xf bank_mask:0xf")
        h(f"v_mov_b32 v{t}, v{r}")
        h("s_nop 1")
        h(f"v_permlane16_swap_b32 v{r}, v{t}")
        h(f"{op} v{r}, v{r}, v{t}")
        h(f"v_mov_b32 v{t}, v{r}")
        h("s_nop 1")
        h(f"v_permlane32_swap_b32 v{r}, v{t}")
        h(f"{op} v{r}, v{r}, v{t}")
    allred_h("v_add_f32", 208, 209)
    h("v_cvt_pk_bf16_f32 v208, v208, v208")
    h("v_and_b32 v208, s88, v208")
    h("v_mul_f32 v208, s87, v208")
    h("v_sub_f32 v208, 0, v208")
    h("v_exp_f32 v208, v208")
    h("s_nop 0")
    h("v_add_f32 v208, 1.0, v208")
    h("v_rcp_f32 v208, v208")
    h("s_nop 0")
    h("v_cvt_pk_bf16_f32 v208, v208, v208")
    h("v_and_b32 v208, s88, v208")
    h(f"v_mov_b32 v209, {C_GATE}")
    h("ds_write_b32 v209, v208")
    h("v_and_b32 v40, 3, v0")
    h("v_bfe_u32 v41, v0, 2, 1")
    h("v_lshl_add_u32 v40, v41, 3, v40")
    h("v_bfe_u32 v42, v0, 3, 1")
    h("v_lshl_add_u32 v40, v42, 5, v40")
    h("v_lshlrev_b32 v40, 2, v40")
    h("v_lshlrev_b32 v41, 2, v41")
    h("v_sub_u32 v41, 32, v41")
    h("s_bfe_u32 s86, s2, 0x30002")
    h("s_and_b32 s92, s86, 3")
    h("s_lshr_b32 s93, s86, 2")
    h("s_lshl_b32 s93, s93, 3")
    h("s_add_u32 s92, s92, s93")
    h("s_lshl_b32 s92, 1, s92")
    h("v_and_b32 v43, 3, v0")
    h("v_lshlrev_b32 v43, 8, v43")
    h("v_lshrrev_b32 v44, 2, v0")
    h("v_lshl_add_u32 v43, v44, 4, v43")
    h("s_lshr_b32 s93, s2, 5")
    h("s_lshl_b32 s93, s93, 13")
    h("s_lshl_b32 s86, s86, 10")
    h("s_add_u32 s93, s93, s86")
    h(f"s_mov_b32 s85, {spin}")
    h.label("L_pq")
    h("buffer_load_dword v45, v40, s[76:79], 0 offen sc1")
    h("s_waitcnt vmcnt(0)")
    h("v_cmp_eq_u32 s[86:87], v45, v41")
    h("s_sub_u32 s85, s85, 1")
    h("s_cmp_eq_u32 s85, 0")
    h("s_cbranch_scc1 L_pq_ok")
    h("s_and_b32 s86, s86, s92")
    h("s_cbranch_scc1 L_pq_ok")
    h(f"s_sleep {poll_sleep}")
    h("s_branch L_pq")
    h.label("L_pq_ok")
    h("buffer_load_dwordx4 v[14:17], v43, s[12:15], s93 offen sc1")
    h("v_lshlrev_b32 v46, 4, v0")
    h(f"v_add_u32 v46, {L_Q}, v46")
    h(f"v_mov_b32 v47, {C_FLAG}")
    h("s_waitcnt vmcnt(0)")
    h("ds_write_b128 v46, v[14:17]")
    h("s_waitcnt lgkmcnt(0)")
    h("ds_write_b32 v47, v36")
    if stamps:
        h("s_memrealtime s[94:95]")
    h("s_and_b32 s92, s89, 3")
    h("s_lshr_b32 s93, s89, 2")
    h("s_lshl_b32 s93, s93, 3")
    h("s_add_u32 s92, s92, s93")
    h("s_add_u32 s92, s92, 4")
    h("s_lshl_b32 s92, 1, s92")
    h("s_or_b32 s92, s92, 0x0f0f")
    h(f"s_mov_b32 s85, {spin}")
    h.label("L_ph")
    h("buffer_load_dword v45, v40, s[76:79], 0 offen sc1")
    h("s_waitcnt vmcnt(0)")
    h("v_cmp_eq_u32 s[86:87], v45, v41")
    h("s_sub_u32 s85, s85, 1")
    h("s_cmp_eq_u32 s85, 0")
    h("s_cbranch_scc1 L_ph_ok")
    h("s_and_b32 s86, s86, s92")
    h("s_cmp_eq_u32 s86, s92")
    h("s_cbranch_scc1 L_ph_ok")
    h(f"s_sleep {poll_sleep}")
    h("s_branch L_ph")
    h.label("L_ph_ok")
    h("v_and_b32 v48, 7, v0")
    h("v_mul_u32_u24 v48, 3584, v48")
    h("v_lshl_add_u32 v48, v55, 4, v48")
    h("s_mul_i32 s86, s89, 448")
    h(f"s_add_u32 s86, s86, {WS_H}")
    for kk in range(7):
        h(f"buffer_load_dwordx4 v[{XR+4*kk}:{XR+4*kk+3}], v48, s[12:15], s86 offen offset:{kk*64} sc1")
    h("s_waitcnt vmcnt(0)")
    proj(56, 32, 7, XR, 20)
    h("s_mov_b32 s92, 0x00ff00ff")
    h("s_mov_b32 s93, 0x00ff00ff")
    h("s_mov_b64 exec, s[92:93]")
    h("s_nop 5")
    h("buffer_store_dwordx4 v[20:23], v62, s[12:15], s43 offen sc1")
    h("s_mov_b64 exec, -1")
    if stamps:
        h("s_waitcnt lgkmcnt(0)")
        h("s_mov_b32 s93, s94")
        h("s_memrealtime s[94:95]")
        h("s_waitcnt lgkmcnt(0)")
        h("s_mov_b32 s95, s94")
        h("s_mov_b32 s94, s93")
    h("s_nop 1")
    for i in range(D):
        u, r = divmod(i, 4)
        if r == 0:
            h(f"s_add_u32 s83, s81, {u * 32768}")
        k = KREG(i)
        h(f"buffer_load_dwordx4 v[{k}:{k+3}], v1, s[4:7], s83 offen offset:{r*1024} nt")
    h("s_branch L_streamA")

    src = HEADER_COMMENT
    src += f"; @launch grid=(256,1,1) block=(512,1,1) lds={LDS_TOTAL}\n"
    src += '.amdgcn_target "amdgcn-amd-amdhsa--gfx950"\n.text\n'
    src += f".globl {KN}\n.p2align 8\n.type {KN},@function\n{KN}:\n"
    src += e.text() + "\n" + h.text() + "\nL_done:\n    s_endpgm\n"
    src += f""".section .rodata,"a"
.p2align 6
.amdhsa_kernel {KN}
  .amdhsa_next_free_vgpr 256
  .amdhsa_next_free_sgpr 102
  .amdhsa_accum_offset 256
  .amdhsa_group_segment_fixed_size 0
  .amdhsa_kernarg_size 104
  .amdhsa_user_sgpr_count 2
  .amdhsa_user_sgpr_kernarg_segment_ptr 1
  .amdhsa_system_sgpr_workgroup_id_x 1
.end_amdhsa_kernel
"""
    return src


if __name__ == "__main__":
    import argparse
    ap = argparse.ArgumentParser()
    ap.add_argument("out")
    ap.add_argument("--D", type=int, default=4)
    ap.add_argument("--NB", type=int, default=32)
    ap.add_argument("--LAG", type=int, default=20)
    ap.add_argument("--wnt", default="nt")
    ap.add_argument("--dump", default=None)
    ap.add_argument("--stamps", action="store_true")
    a = ap.parse_args()
    open(a.out, "w").write(gen(D=a.D, NB=a.NB, LAG=a.LAG, wnt=a.wnt, dump=a.dump, stamps=a.stamps))
```

```python
import sys

KN = "gated_mix__gqa_block_cached__glu_gated_glu__decode_kernel"

HEADER_COMMENT = """; Kernarg layout for this problem (104 bytes, ptrs only, base s[0:1]):
"""

WS_Q = 0x0
WS_G = 0x100000
WS_PO = 0x180000
WS_PS = 0x200000
WS_EP = 0x208000
WS_PA = 0x280000
WS_SIZE = 0x380000
WS_DUMP = 0x1000000
WS_STAMP = 0x2000000

RING = 16384
LDS_A = 131072
LDS_B = 147456
LDS_Q = LDS_B + 0
LDS_OB = LDS_B + 2048
LDS_TOTAL = 163840


class E:
    def __init__(self):
        self.o = []
        self.q = []
        self.lab = 0

    def __call__(self, s):
        self.o.append(s)

    def label(self, name):
        self.o.append(name + ":")

    def newlab(self, p="L"):
        self.lab += 1
        return f"{p}_{self.lab}"

    def vm(self, tag, s):
        self.o.append(s)
        self.q.append(tag)

    def wait_tag(self, tag):
        if tag not in self.q:
            return
        i = self.q.index(tag)
        n = len(self.q) - 1 - i
        self.o.append(f"s_waitcnt vmcnt({min(n, 63)})")
        self.q = self.q[i + 1:]

    def wait_all(self):
        self.o.append("s_waitcnt vmcnt(0)")
        self.q = []

    def text(self):
        return "\n".join(("    " + x) if not x.endswith(":") else x for x in self.o)


def srd(e, d, lo, size):
    e(f"s_mov_b32 s{d}, s{lo}")
    e(f"s_and_b32 s{d+1}, s{lo+1}, 0xffff")
    e(f"s_mov_b32 s{d+2}, {size}")
    e(f"s_mov_b32 s{d+3}, 0x20000")


LOG2E = 0x3fb8aa3b
SCALE = 0x3db504f3
SENT = 0xffffffff


def gen(D=4, NB=32, LAG=20, wnt="nt", dump=None, stamps=False, spin=200000, poll_sleep=1):
    e = E()
    T_WQ = 2 * RING
    T_GU = 3 * RING
    T_WD = LDS_B + 8192
    T_WO = LDS_A
    C_FLAG = LDS_B + 0
    C_CNT = LDS_B + 4
    C_GATE = LDS_B + 16
    L_Q = LDS_B + 1024
    L_ST = LDS_B + 2048
    L_WT = LDS_B + 2304
    L_OB = LDS_B + 4096
    OSTR = 576

    e("s_cmp_ge_u32 s2, 256")
    e("s_cbranch_scc1 L_done")
    if stamps:
        e("s_memrealtime s[96:97]")
    e("s_load_dwordx16 s[16:31], s[0:1], 0")
    e("s_load_dwordx8 s[32:39], s[0:1], 64")
    e("s_load_dwordx2 s[40:41], s[0:1], 96")
    e("v_lshrrev_b32 v1, 6, v0")
    e("v_and_b32 v0, 63, v0")
    e("v_readfirstlane_b32 s3, v1")
    e("v_and_b32 v50, 3, v0")
    e("v_bfe_u32 v51, v0, 2, 2")
    e("v_lshrrev_b32 v52, 4, v0")
    e("v_lshlrev_b32 v1, 4, v50")
    e("v_lshl_add_u32 v1, v51, 8, v1")
    e("v_lshl_add_u32 v1, v52, 6, v1")
    e("v_and_b32 v53, 15, v0")
    e("v_and_b32 v54, 1, v52")
    e("v_lshlrev_b32 v54, 1, v54")
    e("v_xor_b32 v53, v53, v54")
    for n in range(4):
        e(f"v_xor_b32 v55, {n*4}, v53")
        e(f"v_lshlrev_b32 v55, 4, v55")
        e(f"v_lshl_add_u32 v{2+n}, v52, 8, v55")
    e("v_lshl_add_u32 v55, v51, 2, v52")
    e("v_lshlrev_b32 v55, 8, v55")
    e("v_lshl_add_u32 v55, v50, 3, v55")
    e("s_lshl_b32 s80, s3, 14")
    e("v_add_u32 v55, s80, v55")
    e("v_and_b32 v56, 1, v52")
    e("v_lshl_add_u32 v56, v51, 1, v56")
    for dt in range(8):
        e(f"v_xor_b32 v57, {dt}, v56")
        e(f"v_lshl_add_u32 v{6+dt}, v57, 5, v55")
    e("s_waitcnt lgkmcnt(0)")
    srd(e, 4, 18, 128 << 20)
    srd(e, 8, 20, 128 << 20)
    srd(e, 12, 40, (WS_STAMP + (1 << 20)) if (dump or stamps) else WS_SIZE)
    e("s_lshl_b32 s81, s2, 19")
    e("s_lshl_b32 s82, s3, 12")
    e("s_add_u32 s81, s81, s82")
    e("s_mov_b64 vcc, 0")
    e("s_cmp_eq_u32 s3, 0")
    e("s_cbranch_scc1 L_helper")

    KREG = lambda n: 64 + 4 * (n % 48)

    def sstamp(k):
        if stamps:
            e("s_memrealtime s[98:99]"); e("s_waitcnt lgkmcnt(0)"); e(f"s_mov_b32 s{44+k}, s98")
    state = dict(I=0)

    def pace():
        l = e.newlab("P")
        e(f"s_cbranch_vccnz {l}")
        e(f"s_waitcnt vmcnt({D-1})")
        e.label(l)

    def issue(paced=True):
        i = state["I"]
        state["I"] += 1
        if paced:
            pace()
        if i < 64:
            u, r = divmod(i, 4)
            if r == 0:
                e(f"s_add_u32 s83, s81, {u * 32768}")
            k = KREG(i)
            e.vm(("K", i), f"buffer_load_dwordx4 v[{k}:{k+3}], v1, s[4:7], s83 offen offset:{r*1024} nt")
        else:
            j = i - 64
            u, r = divmod(j, 4)
            if r == 0:
                e(f"s_add_u32 s84, s81, {u * 32768}")
                e(f"s_add_u32 m0, s80, {(u % 4) * 4096}")
                e("s_nop 0")
            e.vm(("V", j), f"buffer_load_dwordx4 v{2+r}, s[8:11], s84 offen offset:{r*1024} nt lds")

    e("s_barrier")
    e.label("L_streamA")
    while state["I"] < NB:
        issue()
    sstamp(0)
    e(f"v_mov_b32 v50, {C_FLAG}")
    e(f"s_mov_b32 s85, {spin}")
    e.label("L_qwait")
    e("ds_read_b32 v51, v50")
    e("s_waitcnt lgkmcnt(0)")
    e("v_readfirstlane_b32 s86, v51")
    e("s_sub_u32 s85, s85, 1")
    e("s_cmp_eq_u32 s85, 0")
    e("s_cbranch_scc1 L_qok")
    e("s_cmp_lg_u32 s86, 0")
    e("s_cbranch_scc1 L_qok")
    e("s_sleep 2")
    e("s_branch L_qwait")
    e.label("L_qok")
    e("v_lshlrev_b32 v50, 4, v0")
    e(f"ds_read_b128 v[14:17], v50 offset:{L_Q - 0x20000}") if False else None
    e(f"v_add_u32 v50, {L_Q}, v50")
    e("ds_read_b128 v[14:17], v50")
    e("s_waitcnt lgkmcnt(0)")

    sstamp(1)
    DB = [18, 22, 26, 30, 50, 54]
    DREG = lambda n: DB[n % 6]

    def mfma_k(n):
        e.wait_tag(("K", n))
        k = KREG(n); d = DREG(n)
        e(f"v_mfma_f32_16x16x32_bf16 v[{d}:{d+3}], v[{k}:{k+3}], v[14:17], 0")

    def dpp_k(n, j):
        if n < 0 or n > 63:
            return False
        d = DREG(n)
        blk, rem = divmod(n, 32)
        t, ee = divmod(rem, 8)
        R = 34 + blk * 8 + ee
        if j == 0:
            e(f"v_mov_b32_dpp v{R}, v{d+t} quad_perm:[0,1,2,3] row_mask:0xf bank_mask:{1<<t}")
        else:
            v = (t + j) % 4
            e(f"v_add_f32_dpp v{R}, v{d+v}, v{R} row_ror:{(4*(t-v)) % 16} row_mask:0xf bank_mask:{1<<t}")
        return True

    C = 0

    def consume():
        nonlocal C
        if C < 64:
            mfma_k(C)
        else:
            e("s_nop 0")
        for j in range(4):
            if not dpp_k(C - 2 - j, j):
                e("s_nop 0")
        C += 1

    while C < 64:
        I = state["I"]
        can = (I < 64 and I < C + 48) or (64 <= I < 80)
        if can:
            issue()
        consume()
        if C < 64 and (state["I"] - C > LAG or not can):
            consume()
    while state["I"] < 80:
        issue()
    while C < 70:
        consume()

    if dump == "S":
        e("s_lshl_b32 s86, s2, 3"); e("s_add_u32 s86, s86, s3"); e("s_lshl_b32 s86, s86, 12"); e(f"s_add_u32 s86, s86, {WS_DUMP}")
        e("v_lshlrev_b32 v50, 2, v0")
        for r in range(16):
            e.vm(("dump", r), f"buffer_store_dword v{34+r}, v50, s[12:15], s86 offen offset:{r*256}")

    sstamp(2)
    e(f"s_mov_b32 s86, {SCALE}")
    e(f"s_mov_b32 s87, {LOG2E}")
    e("s_mov_b32 s88, 0xffff0000")
    for p in range(8):
        a, b = 34 + 2 * p, 35 + 2 * p
        t = 50 + (p % 4)
        e(f"v_cvt_pk_bf16_f32 v{t}, v{a}, v{b}")
        e(f"v_lshlrev_b32 v{a}, 16, v{t}")
        e(f"v_and_b32 v{b}, s88, v{t}")
        e(f"v_mul_f32 v{a}, s86, v{a}")
        e(f"v_mul_f32 v{b}, s86, v{b}")
        e(f"v_cvt_pk_bf16_f32 v{t}, v{a}, v{b}")
        e(f"v_lshlrev_b32 v{a}, 16, v{t}")
        e(f"v_and_b32 v{b}, s88, v{t}")
    e("v_max3_f32 v50, v34, v35, v36")
    e("v_max3_f32 v51, v37, v38, v39")
    e("v_max3_f32 v52, v40, v41, v42")
    e("v_max3_f32 v53, v43, v44, v45")
    e("v_max3_f32 v50, v50, v46, v47")
    e("v_max3_f32 v51, v51, v48, v49")
    e("v_max3_f32 v50, v50, v51, v52")
    e("v_max_f32 v50, v50, v53")

    def allred(op, r, t):
        e("s_nop 1")
        e(f"{op}_dpp v{r}, v{r}, v{r} row_ror:4 row_mask:0xf bank_mask:0xf")
        e("s_nop 1")
        e(f"{op}_dpp v{r}, v{r}, v{r} row_ror:8 row_mask:0xf bank_mask:0xf")
        e(f"v_mov_b32 v{t}, v{r}")
        e("s_nop 1")
        e(f"v_permlane16_swap_b32 v{r}, v{t}")
        e(f"{op} v{r}, v{r}, v{t}")
        e(f"v_mov_b32 v{t}, v{r}")
        e("s_nop 1")
        e(f"v_permlane32_swap_b32 v{r}, v{t}")
        e(f"{op} v{r}, v{r}, v{t}")

    allred("v_max_f32", 50, 51)
    e("v_mul_f32 v52, s87, v50")
    e("v_sub_f32 v52, 0, v52")
    for r in range(16):
        e(f"v_fma_f32 v{34+r}, v{34+r}, s87, v52")
    for r in range(16):
        e(f"v_exp_f32 v{34+r}, v{34+r}")
    e("s_nop 0")
    for p in range(8):
        e(f"v_cvt_pk_bf16_f32 v{18+p}, v{34+2*p}, v{35+2*p}")
    e("v_add_f32 v51, v34, v35")
    for r in range(2, 16):
        e(f"v_add_f32 v51, v51, v{34+r}")
    allred("v_add_f32", 51, 53)
    e("s_lshl_b32 s86, s3, 5")
    e(f"s_add_u32 s86, s86, {L_ST}")
    e("v_lshlrev_b32 v53, 3, v0")
    e("v_add_u32 v53, s86, v53")
    e(f"v_mov_b32 v54, {C_CNT}")
    e("v_mov_b32 v55, 1")
    e("s_mov_b64 exec, 0xf")
    e("ds_write_b64 v53, v[50:51]")
    e("s_waitcnt lgkmcnt(0)")
    e("s_mov_b64 exec, 1")
    e("ds_add_rtn_u32 v56, v54, v55")
    e("s_mov_b64 exec, -1")
    ACC = 64
    for r in range(32):
        e(f"v_mov_b32 v{ACC+r}, 0")
    e("s_waitcnt lgkmcnt(0)")
    e("v_readfirstlane_b32 s86, v56")
    e("s_cmp_lg_u32 s86, 7")
    e("s_cbranch_scc1 L_nostats")
    e("v_and_b32 v53, 31, v0")
    e("v_lshlrev_b32 v53, 3, v53")
    e(f"v_add_u32 v53, {L_ST}, v53")
    e("ds_read_b64 v[54:55], v53")
    e("s_waitcnt lgkmcnt(0)")
    e("v_mov_b32 v56, v54")
    allred("v_max_f32", 56, 57)
    e("v_sub_f32 v57, v54, v56")
    e("v_mul_f32 v57, s87, v57")
    e("v_exp_f32 v57, v57")
    e("s_nop 0")
    e("v_mul_f32 v58, v57, v55")
    allred("v_add_f32", 58, 59)
    e("v_mul_f32 v58, 0.5, v58")
    e("v_and_b32 v59, 3, v0")
    e("v_lshlrev_b32 v59, 5, v59")
    e("v_bfe_u32 v60, v0, 2, 3")
    e("v_lshl_add_u32 v59, v60, 2, v59")
    e(f"v_add_u32 v59, {L_WT}, v59")
    e("ds_write_b32 v59, v57")
    e("s_bfe_u32 s86, s2, 0x30002")
    e("s_lshl_b32 s86, s86, 10")
    e("s_lshr_b32 s88, s2, 5")
    e("s_lshl_b32 s88, s88, 5")
    e("s_add_u32 s86, s86, s88")
    e("s_and_b32 s88, s2, 3")
    e("s_lshl_b32 s88, s88, 3")
    e("s_add_u32 s86, s86, s88")
    e(f"s_add_u32 s86, s86, {WS_PS}")
    e("v_lshlrev_b32 v59, 8, v0")
    e("v_mov_b32 v57, v58")
    e("s_mov_b64 exec, 0xf")
    e("buffer_store_dwordx2 v[56:57], v59, s[12:15], s86 offen sc1")
    e("s_mov_b64 exec, -1")
    e.label("L_nostats")
    e("s_cbranch_vccnz L_glu2")
    e.label("L_glu2_ret")

    sstamp(3)
    AREG = lambda k, dt: 96 + (k % 2) * 32 + dt * 4
    BT = lambda k: 26 + (k % 2) * 4
    for u in range(16):
        k, hf = divmod(u, 2)
        blk, t = divmod(k, 4)
        if u in (4, 8, 12):
            sstamp(3 + u // 4)
        if hf == 0:
            if t != 0:
                for r in range(4):
                    e(f"v_mov_b32_dpp v{BT(k)+r}, v{18+blk*4+r} row_ror:{(16-4*t) % 16} row_mask:0xf bank_mask:0xf")
        e.wait_tag(("V", 4 * u + 3))
        for dt in range(8):
            a = AREG(k, dt) + 2 * hf
            e(f"ds_read_b64_tr_b16 v[{a}:{a+1}], v{6+dt} offset:{(u % 4) * 4096}")
        if u + 4 < 16:
            e("s_waitcnt lgkmcnt(0)")
            for _ in range(4):
                issue()
        if hf == 1:
            b = (18 + blk * 4) if t == 0 else BT(k)
            for dt in range(8):
                a = AREG(k, dt)
                if u + 4 >= 16:
                    e(f"s_waitcnt lgkmcnt({7-dt})")
                e(f"v_mfma_f32_16x16x32_bf16 v[{ACC+4*dt}:{ACC+4*dt+3}], v[{a}:{a+3}], v[{b}:{b+3}], v[{ACC+4*dt}:{ACC+4*dt+3}]")
    assert state["I"] == 128
    e("v_and_b32 v50, 3, v0")
    e(f"v_mul_u32_u24 v50, {OSTR}, v50")
    e("v_lshrrev_b32 v51, 4, v0")
    e("v_lshl_add_u32 v50, v51, 4, v50")
    e("v_add_u32 v50, s80, v50")
    e("s_mov_b32 s86, 0x000f000f")
    e("s_mov_b32 s87, 0x000f000f")
    e("s_mov_b64 exec, s[86:87]")
    e("s_nop 1")
    for dt in range(8):
        e(f"ds_write_b128 v50, v[{ACC+4*dt}:{ACC+4*dt+3}] offset:{dt*64}")
    e("s_mov_b64 exec, -1")
    e("s_waitcnt lgkmcnt(0)")
    if stamps:
        e("s_memrealtime s[98:99]")
    e("s_barrier")
    e("s_cmp_ge_u32 s3, 4")
    e("s_cbranch_scc1 L_hop1")
    e("s_cmp_ge_u32 s3, 2")
    e("s_cbranch_scc1 L_fin")
    e("v_lshrrev_b32 v50, 5, v0")
    e("s_lshl_b32 s86, s3, 1")
    e("v_add_u32 v50, s86, v50")
    e("v_and_b32 v51, 31, v0")
    e(f"v_mul_u32_u24 v52, {OSTR}, v50")
    e("v_lshl_add_u32 v52, v51, 4, v52")
    e("v_lshlrev_b32 v53, 5, v50")
    e(f"v_add_u32 v53, {L_WT}, v53")
    e("v_add_u32 v54, 0x10000, v52")
    e("ds_read_b128 v[96:99], v53")
    e("ds_read_b128 v[100:103], v53 offset:16")
    for w in range(8):
        e(f"ds_read_b128 v[{64+4*w}:{67+4*w}], v{52 if w < 4 else 54} offset:{(w % 4) * RING}")
    e("s_bfe_u32 s86, s2, 0x30002")
    e("s_lshl_b32 s86, s86, 16")
    e("s_lshr_b32 s88, s2, 5")
    e("s_lshl_b32 s88, s88, 11")
    e("s_add_u32 s86, s86, s88")
    e("s_and_b32 s88, s2, 3")
    e("s_lshl_b32 s88, s88, 9")
    e("s_add_u32 s86, s86, s88")
    e(f"s_add_u32 s86, s86, {WS_PO}")
    e("v_lshlrev_b32 v55, 14, v50")
    e("v_lshl_add_u32 v55, v51, 4, v55")
    e("s_waitcnt lgkmcnt(7)")
    for c in range(4):
        e(f"v_mul_f32 v{104+c}, v96, v{64+c}")
    for w in range(1, 8):
        e(f"s_waitcnt lgkmcnt({7-w})")
        for c in range(4):
            e(f"v_fmac_f32 v{104+c}, v{96+w}, v{64+4*w+c}")
    e("buffer_store_dwordx4 v[104:107], v55, s[12:15], s86 offen sc1")
    e("s_branch L_fin")

    e.label("L_hop1")
    e("s_sub_u32 s89, s3, 4")
    e("s_lshr_b32 s90, s2, 3")
    e("v_lshrrev_b32 v50, 5, v0")
    e("s_lshl_b32 s86, s89, 1")
    e("v_add_u32 v50, s86, v50")
    e("v_and_b32 v51, 31, v0")
    e("v_lshlrev_b32 v52, 5, v50")
    e("s_lshl_b32 s91, s90, 8")
    e(f"s_add_u32 s91, s91, {WS_PS}")
    e("v_lshlrev_b32 v53, 11, v50")
    e("v_lshl_add_u32 v53, v51, 4, v53")
    e("s_lshl_b32 s92, s90, 14")
    e(f"s_add_u32 s92, s92, {WS_PO}")
    e(f"s_mov_b32 s85, {spin}")
    e.label("L_h1s")
    e("buffer_load_dwordx4 v[64:67], v52, s[12:15], s91 offen sc1")
    e("buffer_load_dwordx4 v[68:71], v52, s[12:15], s91 offen offset:16 sc1")
    for s in range(4):
        e(f"buffer_load_dwordx4 v[{72+4*s}:{75+4*s}], v53, s[12:15], s92 offen offset:{s*512} sc1")
    e("v_lshrrev_b32 v54, 4, v0")
    e("v_bfe_u32 v55, v0, 2, 2")
    e("v_lshl_add_u32 v54, v54, 3, v55")
    e("v_lshlrev_b32 v54, 7, v54")
    e("v_and_b32 v55, 3, v0")
    e("v_lshl_add_u32 v54, v55, 3, v54")
    e("s_lshl_b32 s86, s89, 5")
    e(f"s_add_u32 s86, s86, {T_WO}")
    e("v_add_u32 v54, s86, v54")
    for kk in range(4):
        for hf in range(2):
            a = 160 + kk * 4 + hf * 2
            e(f"ds_read_b64_tr_b16 v[{a}:{a+1}], v54 offset:{(32*kk+4*hf)*128}")
    e("s_waitcnt vmcnt(4)")
    e("v_max3_u32 v56, v64, v65, v66")
    e("v_max3_u32 v56, v56, v67, v68")
    e("v_max3_u32 v56, v56, v69, v70")
    e("v_max_u32 v56, v56, v71")
    e("v_cmp_eq_u32 s[86:87], -1, v56")
    e("s_sub_u32 s85, s85, 1")
    e("s_cmp_eq_u32 s85, 0")
    e("s_cbranch_scc1 L_h1s_ok")
    e("s_cmp_eq_u64 s[86:87], 0")
    e("s_cbranch_scc1 L_h1s_ok")
    e("s_waitcnt vmcnt(0) lgkmcnt(0)")
    e(f"s_sleep {poll_sleep}")
    e("s_branch L_h1s")
    e.label("L_h1s_ok")
    e(f"s_mov_b32 s87, {LOG2E}")
    e("v_max3_f32 v56, v64, v66, v68")
    e("v_max_f32 v56, v56, v70")
    for s in range(4):
        e(f"v_sub_f32 v{64+2*s}, v{64+2*s}, v56")
        e(f"v_mul_f32 v{64+2*s}, s87, v{64+2*s}")
        e(f"v_exp_f32 v{64+2*s}, v{64+2*s}")
    e("s_nop 0")
    e("v_mul_f32 v57, v64, v65")
    for s in range(1, 4):
        e(f"v_fmac_f32 v57, v{64+2*s}, v{65+2*s}")
    e("v_rcp_f32 v57, v57")
    e("s_nop 0")
    for s in range(4):
        e(f"v_mul_f32 v{64+2*s}, v{64+2*s}, v57")
    e("s_branch L_h1o_chk")
    e.label("L_h1o")
    e(f"s_sleep {poll_sleep}")
    for s in range(4):
        e(f"buffer_load_dwordx4 v[{72+4*s}:{75+4*s}], v53, s[12:15], s92 offen offset:{s*512} sc1")
    e.label("L_h1o_chk")
    e("s_waitcnt vmcnt(0)")
    e("v_max3_u32 v56, v72, v73, v74")
    e("v_max3_u32 v57, v75, v76, v77")
    e("v_max3_u32 v58, v78, v79, v80")
    e("v_max3_u32 v59, v81, v82, v83")
    e("v_max3_u32 v56, v56, v84, v85")
    e("v_max3_u32 v57, v57, v86, v87")
    e("v_max3_u32 v56, v56, v57, v58")
    e("v_max_u32 v56, v56, v59")
    e("v_cmp_eq_u32 s[86:87], -1, v56")
    e("s_sub_u32 s85, s85, 1")
    e("s_cmp_eq_u32 s85, 0")
    e("s_cbranch_scc1 L_h1o_ok")
    e("s_cmp_eq_u64 s[86:87], 0")
    e("s_cbranch_scc0 L_h1o")
    e.label("L_h1o_ok")
    for c in range(4):
        e(f"v_mul_f32 v{88+c}, v64, v{72+c}")
    for s in range(1, 4):
        for c in range(4):
            e(f"v_fmac_f32 v{88+c}, v{64+2*s}, v{72+4*s+c}")
    e("v_cvt_pk_bf16_f32 v88, v88, v89")
    e("v_cvt_pk_bf16_f32 v89, v90, v91")
    e("v_mul_u32_u24 v56, 272, v50")
    e("v_lshl_add_u32 v56, v51, 3, v56")
    e(f"v_add_u32 v56, {L_OB}, v56")
    e("ds_write_b64 v56, v[88:89]")
    e("v_and_b32 v57, 7, v0")
    e("v_mul_u32_u24 v57, 272, v57")
    e("v_lshrrev_b32 v58, 4, v0")
    e("v_lshl_add_u32 v57, v58, 4, v57")
    e(f"v_add_u32 v57, {L_OB}, v57")
    e("v_and_b32 v59, 15, v0")
    e("v_lshlrev_b32 v59, 17, v59")
    e("v_lshl_add_u32 v59, v58, 4, v59")
    e("s_and_b32 s86, s2, 7")
    e("s_lshl_b32 s86, s86, 2")
    e("s_add_u32 s86, s86, s89")
    e("s_lshl_b32 s86, s86, 12")
    e("s_lshl_b32 s88, s90, 6")
    e("s_add_u32 s86, s86, s88")
    e(f"s_add_u32 s86, s86, {WS_PA}")
    e("s_waitcnt lgkmcnt(0)")
    e("s_barrier")
    for kk in range(4):
        e(f"ds_read_b128 v[{72+4*kk}:{75+4*kk}], v57 offset:{kk*64}")
    for kk in range(4):
        e(f"s_waitcnt lgkmcnt({3-kk})")
        c = "0" if kk == 0 else "v[88:91]"
        e(f"v_mfma_f32_16x16x32_bf16 v[88:91], v[{160+4*kk}:{163+4*kk}], v[{72+4*kk}:{75+4*kk}], {c}")
    e("s_mov_b32 s92, 0x00ff00ff")
    e("s_mov_b32 s93, 0x00ff00ff")
    e("s_mov_b64 exec, s[92:93]")
    e("s_nop 5")
    e("buffer_store_dwordx4 v[88:91], v59, s[12:15], s86 offen sc1")
    e("s_mov_b64 exec, -1")
    e("s_cmp_lg_u32 s3, 4")
    e("s_cbranch_scc1 L_fin")

    e("s_lshl_b32 s86, s2, 12")
    e(f"s_add_u32 s86, s86, {WS_PA}")
    e("v_lshlrev_b32 v50, 4, v0")
    e(f"v_mov_b32 v52, {C_GATE}")
    e("ds_read_b32 v53, v52")
    e(f"s_mov_b32 s85, {spin}")
    e("s_branch L_h2_ld")
    e.label("L_h2")
    e(f"s_sleep {poll_sleep}")
    e.label("L_h2_ld")
    e("buffer_load_dwordx4 v[64:67], v50, s[12:15], s86 offen sc1")
    e("buffer_load_dwordx4 v[68:71], v50, s[12:15], s86 offen offset:1024 sc1")
    e("buffer_load_dwordx4 v[72:75], v50, s[12:15], s86 offen offset:2048 sc1")
    e("buffer_load_dwordx4 v[92:95], v50, s[12:15], s86 offen offset:3072 sc1")
    e("s_waitcnt vmcnt(0)")
    e("v_max3_u32 v56, v64, v65, v66")
    e("v_max3_u32 v57, v67, v68, v69")
    e("v_max3_u32 v58, v70, v71, v72")
    e("v_max3_u32 v56, v56, v73, v74")
    e("v_max3_u32 v57, v57, v58, v75")
    e("v_max3_u32 v56, v56, v92, v93")
    e("v_max3_u32 v57, v57, v94, v95")
    e("v_max_u32 v56, v56, v57")
    e("v_cmp_eq_u32 s[88:89], -1, v56")
    e("s_sub_u32 s85, s85, 1")
    e("s_cmp_eq_u32 s85, 0")
    e("s_cbranch_scc1 L_h2_ok")
    e("s_cmp_eq_u64 s[88:89], 0")
    e("s_cbranch_scc0 L_h2")
    e.label("L_h2_ok")
    for c in range(4):
        e(f"v_add_f32 v{64+c}, v{64+c}, v{68+c}")
        e(f"v_add_f32 v{72+c}, v{72+c}, v{92+c}")
    regs = [64, 65, 66, 67, 72, 73, 74, 75]
    e("s_nop 1")
    for r in regs:
        e(f"v_add_f32_dpp v{r}, v{r}, v{r} row_ror:4 row_mask:0xf bank_mask:0xf")
    for r in regs:
        e(f"v_add_f32_dpp v{r}, v{r}, v{r} row_ror:8 row_mask:0xf bank_mask:0xf")
    for r in regs:
        e(f"v_mov_b32 v{r+12}, v{r}")
    e("s_nop 1")
    for r in regs:
        e(f"v_permlane16_swap_b32 v{r}, v{r+12}")
    for r in regs:
        e(f"v_add_f32 v{r}, v{r}, v{r+12}")
    for r in regs:
        e(f"v_mov_b32 v{r+12}, v{r}")
    e("s_nop 1")
    for r in regs:
        e(f"v_permlane32_swap_b32 v{r}, v{r+12}")
    for r in regs:
        e(f"v_add_f32 v{r}, v{r}, v{r+12}")
    e("s_mov_b32 s88, 0xffff0000")
    e("s_waitcnt lgkmcnt(0)")
    e("v_sub_f32 v54, 1.0, v53")
    e("v_cvt_pk_bf16_f32 v54, v54, v54")
    e("v_and_b32 v54, s88, v54")

    def rnd2(a, b, t):
        e(f"v_cvt_pk_bf16_f32 v{t}, v{a}, v{b}")
        e(f"v_lshlrev_b32 v{a}, 16, v{t}")
        e(f"v_and_b32 v{b}, s88, v{t}")
    rnd2(64, 65, 56); rnd2(66, 67, 57); rnd2(72, 73, 58); rnd2(74, 75, 59)
    for c in range(4):
        e(f"v_mul_f32 v{64+c}, v53, v{64+c}")
        e(f"v_mul_f32 v{72+c}, v54, v{72+c}")
    rnd2(64, 65, 56); rnd2(66, 67, 57); rnd2(72, 73, 58); rnd2(74, 75, 59)
    for c in range(4):
        e(f"v_add_f32 v{64+c}, v{64+c}, v{72+c}")
    e("v_cvt_pk_bf16_f32 v64, v64, v65")
    e("v_cvt_pk_bf16_f32 v65, v66, v67")
    srd(e, 72, 36, 8192)
    e("s_lshl_b32 s86, s2, 5")
    e("v_lshlrev_b32 v50, 3, v0")
    e("s_mov_b64 exec, 0xf")
    e("buffer_store_dwordx2 v[64:65], v50, s[72:75], s86 offen")
    e("s_mov_b64 exec, -1")
    e.label("L_fin")
    if stamps:
        e("s_memrealtime s[100:101]")
        e("s_waitcnt lgkmcnt(0)")
        e("s_lshl_b32 s86, s2, 3"); e("s_add_u32 s86, s86, s3"); e("s_lshl_b32 s86, s86, 6"); e(f"s_add_u32 s86, s86, {WS_STAMP}")
        for k in range(8):
            e(f"v_mov_b32 v{72+k}, s{44+k}")
        e("v_mov_b32 v64, s96"); e("v_mov_b32 v65, s94"); e("v_mov_b32 v66, s95"); e("v_mov_b32 v67, s98")
        e("v_mov_b32 v68, s100"); e("v_mov_b32 v69, s72"); e("v_mov_b32 v70, s73"); e("v_mov_b32 v71, s74"); e("v_mov_b32 v50, 0")
        e("s_mov_b64 exec, 1")
        e("buffer_store_dwordx4 v[64:67], v50, s[12:15], s86 offen")
        e("buffer_store_dwordx4 v[68:71], v50, s[12:15], s86 offen offset:16")
        e("buffer_store_dwordx4 v[72:75], v50, s[12:15], s86 offen offset:32")
        e("buffer_store_dwordx4 v[76:79], v50, s[12:15], s86 offen offset:48")
    e("s_endpgm")

    h = E()
    h.lab = 10000
    h.label("L_helper")
    h(f"s_add_u32 s62, s40, {WS_EP}")
    h("s_addc_u32 s63, s41, 0")
    h("s_load_dwordx2 s[70:71], s[62:63], 0")
    h("s_mov_b64 vcc, -1")
    h(f"v_mov_b32 v50, {C_FLAG}")
    h("v_mov_b32 v52, 0"); h("v_mov_b32 v53, 0")
    h("ds_write_b64 v50, v[52:53]")
    srd(h, 48, 22, 4 << 20)
    srd(h, 44, 16, 8192)
    h("s_and_b32 s89, s2, 7")
    h("s_lshr_b32 s90, s2, 3")
    h("s_lshr_b32 s91, s2, 6")
    h("s_and_b32 s42, s90, 7")
    h("v_lshrrev_b32 v50, 3, v0")
    h("v_and_b32 v51, 7, v0")
    h("v_lshlrev_b32 v51, 4, v51")
    h("v_lshl_add_u32 v52, v50, 13, v51")
    h("v_lshl_add_u32 v53, v50, 10, v51")
    h("v_mul_u32_u24 v54, 3584, v50")
    h("v_add_u32 v54, v54, v51")
    h("v_lshrrev_b32 v55, 4, v0")

    def tile(tag, n, ldsbase, vo, sr, sreg, step):
        for i in range(n):
            h(f"s_mov_b32 m0, {ldsbase + i*1024}")
            if i:
                h(f"s_add_u32 s{sreg}, s{sreg}, {step}")
            else:
                h("s_nop 0")
            h.vm((tag, i), f"buffer_load_dwordx4 v{vo}, s[{sr}:{sr+3}], s{sreg} offen {wnt} lds")

    h("s_lshl_b32 s86, s91, 20")
    h("s_lshl_b32 s87, s89, 10")
    h("s_lshl_b32 s88, s42, 7")
    h("s_add_u32 s43, s87, s88")
    h("s_add_u32 s86, s86, s43")
    tile("wq", 16, T_WQ, 52, 48, 86, 0x10000)
    h("v_and_b32 v56, 7, v0")
    h("v_lshlrev_b32 v56, 10, v56")
    h("v_lshl_add_u32 v56, v55, 4, v56")
    h("s_lshl_b32 s86, s91, 8")
    XR = 64
    for kk in range(4):
        h.vm(("x", kk), f"buffer_load_dwordx4 v[{XR+4*kk}:{XR+4*kk+3}], v56, s[44:47], s86 offen offset:{kk*64}")
    h("s_waitcnt lgkmcnt(0)")
    h("s_barrier")
    h("s_add_u32 s70, s70, 1")
    h("s_add_u32 s71, s71, 0x9e3779b9")
    h("s_lshl_b32 s92, s89, 3")
    h("s_add_u32 s92, s92, s42")
    h("s_min_u32 s93, s92, 55")
    h("s_cmp_ge_u32 s93, 28")
    h("s_cselect_b32 s52, s30, s28")
    h("s_cselect_b32 s53, s31, s29")
    h("s_cselect_b32 s87, 28, 0")
    h("s_cselect_b32 s88, 1, 0")
    h("s_and_b32 s53, s53, 0xffff")
    h(f"s_mov_b32 s54, {512*3584}")
    h("s_mov_b32 s55, 0x20000")
    h("s_sub_u32 s93, s93, s87")
    h(f"s_mul_i32 s86, s91, {128*3584}")
    h("s_lshl_b32 s87, s93, 7")
    h("s_add_u32 s86, s86, s87")
    h("s_lshl_b32 s56, s91, 1")
    h("s_add_u32 s56, s56, s88")
    h(f"s_mul_i32 s56, s56, {8*7168}")
    h("s_lshl_b32 s87, s93, 8")
    h("s_add_u32 s56, s56, s87")
    h(f"s_add_u32 s56, s56, {WS_G}")
    h("s_mov_b32 s57, s92")
    tile("gu", 16, T_GU, 54, 52, 86, 8 * 3584)
    for r in range(4):
        h(f"v_mov_b32 v{56+r}, -1")
    h("s_bfe_u32 s86, s2, 0x30002")
    h("s_lshl_b32 s92, s86, 16")
    h("s_lshr_b32 s88, s2, 5")
    h("s_lshl_b32 s93, s88, 11")
    h("s_add_u32 s92, s92, s93")
    h("s_and_b32 s87, s2, 3")
    h("s_lshl_b32 s93, s87, 9")
    h("s_add_u32 s92, s92, s93")
    h(f"s_add_u32 s92, s92, {WS_PO}")
    h("v_lshrrev_b32 v60, 5, v0")
    h("v_lshlrev_b32 v60, 14, v60")
    h("v_and_b32 v61, 31, v0")
    h("v_lshl_add_u32 v60, v61, 4, v60")
    h.vm("c0", "buffer_store_dwordx4 v[56:59], v60, s[12:15], s92 offen sc1")
    h("s_add_u32 s92, s92, 0x8000")
    h.vm("c1", "buffer_store_dwordx4 v[56:59], v60, s[12:15], s92 offen sc1")
    h("s_lshl_b32 s92, s86, 10")
    h("s_lshl_b32 s93, s88, 5")
    h("s_add_u32 s92, s92, s93")
    h("s_lshl_b32 s93, s87, 3")
    h("s_add_u32 s92, s92, s93")
    h(f"s_add_u32 s92, s92, {WS_PS}")
    h("v_lshlrev_b32 v60, 8, v0")
    h("s_mov_b64 exec, 0xf")
    h.vm("c2", "buffer_store_dwordx2 v[56:57], v60, s[12:15], s92 offen sc1")
    h("s_mov_b64 exec, -1")
    h("v_lshlrev_b32 v60, 17, v50")
    h("v_bfe_u32 v61, v0, 2, 1")
    h("v_lshl_add_u32 v60, v61, 12, v60")
    h("v_and_b32 v61, 3, v0")
    h("v_lshl_add_u32 v60, v61, 4, v60")
    h("s_lshl_b32 s58, s89, 14")
    h("s_lshl_b32 s93, s90, 6")
    h("s_add_u32 s58, s58, s93")
    h(f"s_add_u32 s58, s58, {WS_PA}")
    h("s_add_u32 s92, s58, 8192")
    h.vm("c3", "buffer_store_dwordx4 v[56:59], v60, s[12:15], s58 offen sc1")
    h.vm("c4", "buffer_store_dwordx4 v[56:59], v60, s[12:15], s58 offen offset:2048 sc1")
    h.vm("c5", "buffer_store_dwordx4 v[56:59], v60, s[12:15], s92 offen sc1")
    h.vm("c6", "buffer_store_dwordx4 v[56:59], v60, s[12:15], s92 offen offset:2048 sc1")
    srd(h, 64, 34, 1024)
    h("v_lshlrev_b32 v61, 4, v0")
    h("s_lshr_b32 s86, s2, 5")
    h("s_lshl_b32 s86, s86, 10")
    h.vm("gx", "buffer_load_dwordx4 v[200:203], v61, s[44:47], s86 offen")
    h.vm("gw", "buffer_load_dwordx4 v[204:207], v61, s[64:67], 0 offen")
    srd(h, 76, 38, 256)
    h("v_bfe_u32 v50, v0, 2, 2")
    h("v_lshl_add_u32 v50, v55, 3, v50")
    h("v_and_b32 v51, 3, v0")
    h("v_lshlrev_b32 v62, 7, v50")
    h("v_lshl_add_u32 v62, v51, 3, v62")
    h("v_and_b32 v59, 15, v0")
    h("v_lshlrev_b32 v63, 15, v59")
    h("v_lshl_add_u32 v63, v55, 5, v63")
    h("v_mul_u32_u24 v48, 7168, v59")
    h("v_lshl_add_u32 v48, v55, 4, v48")
    h("s_mov_b32 s60, 0x00ff00ff")
    h("s_mov_b32 s61, 0x00ff00ff")
    for g8 in range(8):
        h(f"v_mov_b32 v{162+4*g8}, s70")
        h(f"v_mov_b32 v{163+4*g8}, s71")

    def proj(hh, areg, base, nk, breg, dreg, ar):
        for kk in range(nk):
            for nt in range(4):
                for hf in range(2):
                    a = ar + ((kk % 2) * 4 + nt) * 4 + hf * 2
                    hh(f"ds_read_b64_tr_b16 v[{a}:{a+1}], v{areg} offset:{base + (32*kk+4*hf)*128 + nt*32}")
            for nt in range(4):
                hh(f"s_waitcnt lgkmcnt({2*(3-nt)})")
                a = ar + ((kk % 2) * 4 + nt) * 4
                d = dreg + 4 * nt
                c = "0" if kk == 0 else f"v[{d}:{d+3}]"
                hh(f"v_mfma_f32_16x16x32_bf16 v[{d}:{d+3}], v[{a}:{a+3}], v[{breg+4*kk}:{breg+4*kk+3}], {c}")

    def hstamp(k):
        if stamps:
            h("s_memrealtime s[98:99]"); h("s_waitcnt lgkmcnt(0)"); h(f"s_mov_b32 s{72+k}, s98")
    h.wait_tag(("x", 3))
    hstamp(0)
    proj(h, 62, T_WQ, 4, XR, 96, 128)
    h("s_lshl_b32 s86, s91, 18")
    h("s_lshl_b32 s87, s43, 2")
    h("s_add_u32 s86, s86, s87")
    h("s_mov_b64 exec, s[60:61]")
    h("s_nop 1")
    for nt in range(4):
        for hf in range(2):
            g8 = nt * 2 + hf
            h(f"v_mov_b32 v{160+4*g8}, v{96+4*nt+2*hf}")
            h(f"v_mov_b32 v{161+4*g8}, v{97+4*nt+2*hf}")
            h.vm(("qst", g8), f"buffer_store_dwordx4 v[{160+4*g8}:{163+4*g8}], v63, s[12:15], s86 offen offset:{nt*128+hf*16} sc1")
    h("s_mov_b64 exec, -1")
    srd(h, 64, 32, 1792 * 1024)
    h(f"s_mul_i32 s86, s90, {56*1024}")
    h("s_lshl_b32 s93, s89, 7")
    h("s_add_u32 s86, s86, s93")
    tile("wd", 8, T_WD, 53, 64, 86, 8192)
    h("v_bfe_u32 v40, v0, 3, 2")
    h("v_lshlrev_b32 v40, 18, v40")
    h("v_and_b32 v41, 7, v0")
    h("v_lshl_add_u32 v40, v41, 9, v40")
    h("s_bfe_u32 s86, s2, 0x30002")
    h("s_lshr_b32 s93, s2, 5")
    h("s_lshl_b32 s93, s93, 15")
    h("s_lshl_b32 s86, s86, 12")
    h("s_add_u32 s93, s93, s86")
    h("v_and_b32 v43, 3, v0")
    h("v_lshlrev_b32 v43, 10, v43")
    h("v_lshrrev_b32 v44, 2, v0")
    h("v_lshl_add_u32 v43, v44, 6, v43")
    h("s_add_u32 s66, s93, 0x40000")
    h("s_add_u32 s67, s93, 0x80000")
    h("s_add_u32 s68, s93, 0xc0000")
    h.wait_tag(("gu", 15))
    proj(h, 62, T_GU, 4, XR, 112, 128)
    h("v_mov_b32 v36, 1")
    h("s_and_b32 s86, s89, 3")
    h("s_lshr_b32 s92, s89, 2")
    h("s_lshl_b32 s92, s92, 5")
    h("s_add_u32 s86, s86, s92")
    h("s_lshl_b32 s86, s86, 2")
    h("v_mov_b32 v37, s86")
    h("s_cmp_lt_u32 s57, 56")
    h("s_cbranch_scc0 L_nog")
    h("s_mov_b64 exec, s[60:61]")
    for nt in range(4):
        h(f"buffer_store_dwordx4 v[{112+4*nt}:{115+4*nt}], v48, s[12:15], s56 offen offset:{nt*64} sc1")
    h("s_mov_b64 exec, -1")
    h.label("L_nog")
    h.q = []
    h(f"s_mov_b32 s85, {spin}")
    h.label("L_pq")
    h("buffer_load_dwordx4 v[44:47], v40, s[12:15], s93 offen offset:496 sc1")
    h("s_waitcnt vmcnt(0)")
    h("v_cmp_ne_u64 s[86:87], s[70:71], v[46:47]")
    h("s_sub_u32 s85, s85, 1")
    h("s_cmp_eq_u32 s85, 0")
    h("s_cbranch_scc1 L_pq_ok")
    h("s_cmp_eq_u64 s[86:87], 0")
    h("s_cbranch_scc1 L_pq_ok")
    h(f"s_sleep {poll_sleep}")
    h("s_branch L_pq")
    h.label("L_pq_ok")
    hstamp(1)
    for kq, sr in enumerate((93, 66, 67, 68)):
        for c in range(4):
            r = 64 + 16 * kq + 4 * c
            h(f"buffer_load_dwordx4 v[{r}:{r+3}], v43, s[12:15], s{sr} offen offset:{c*16} sc1")
    h("v_lshlrev_b32 v46, 4, v0")
    h(f"v_add_u32 v46, {L_Q}, v46")
    h(f"v_mov_b32 v47, {C_FLAG}")
    h("s_mov_b64 s[64:65], 0")
    h("s_waitcnt vmcnt(0)")
    for gi in range(16):
        r = 64 + 4 * gi
        h(f"v_cmp_ne_u64 s[86:87], s[70:71], v[{r+2}:{r+3}]")
        h("s_or_b64 s[64:65], s[64:65], s[86:87]")
    h("s_cmp_eq_u32 s85, 0")
    h("s_cbranch_scc1 L_pq_ok2")
    h("s_cmp_eq_u64 s[64:65], 0")
    h("s_cbranch_scc0 L_pq")
    h.label("L_pq_ok2")
    for c in range(4):
        for k2 in range(2):
            r = 64 + 4 * c + k2
            h(f"v_add_f32 v{r}, v{r}, v{r+16}")
            h(f"v_add_f32 v{r+32}, v{r+32}, v{r+48}")
    for c in range(4):
        for k2 in range(2):
            r = 64 + 4 * c + k2
            h(f"v_add_f32 v{r}, v{r}, v{r+32}")
    for c in range(4):
        h(f"v_cvt_pk_bf16_f32 v{14+c}, v{64+4*c}, v{65+4*c}")
    h("ds_write_b128 v46, v[14:17]")
    h("s_waitcnt lgkmcnt(0)")
    h("ds_write_b32 v47, v36")
    if stamps:
        h("s_memrealtime s[94:95]")
    h("s_mov_b64 exec, 1")
    h("buffer_atomic_add v36, v37, s[76:79], 0 offen")
    h("s_mov_b64 exec, -1")
    srd(h, 64, 24, 4 << 20)
    h("s_lshl_b32 s86, s90, 17")
    h("s_lshl_b32 s93, s89, 7")
    h("s_add_u32 s86, s86, s93")
    tile("wo", 16, T_WO, 53, 64, 86, 8192)
    h("s_mov_b32 s88, 0xffff0000")
    h(f"s_mov_b32 s87, {LOG2E}")
    for c in range(4):
        h(f"v_lshlrev_b32 v{208+2*c}, 16, v{200+c}"); h(f"v_and_b32 v{209+2*c}, s88, v{200+c}")
        h(f"v_lshlrev_b32 v{216+2*c}, 16, v{204+c}"); h(f"v_and_b32 v{217+2*c}, s88, v{204+c}")
    for c in range(8):
        h(f"v_mul_f32 v{208+c}, v{208+c}, v{216+c}")
    for c in range(4):
        h(f"v_cvt_pk_bf16_f32 v{216+c}, v{208+2*c}, v{209+2*c}")
        h(f"v_lshlrev_b32 v{208+2*c}, 16, v{216+c}"); h(f"v_and_b32 v{209+2*c}, s88, v{216+c}")
    for c in range(1, 8):
        h(f"v_add_f32 v208, v208, v{208+c}")
    h("s_nop 1")
    h("v_add_f32_dpp v208, v208, v208 quad_perm:[1,0,3,2] row_mask:0xf bank_mask:0xf")
    h("s_nop 1")
    h("v_add_f32_dpp v208, v208, v208 quad_perm:[2,3,0,1] row_mask:0xf bank_mask:0xf")

    def allred_h(op, r, t):
        h("s_nop 1")
        h(f"{op}_dpp v{r}, v{r}, v{r} row_ror:4 row_mask:0xf bank_mask:0xf")
        h("s_nop 1")
        h(f"{op}_dpp v{r}, v{r}, v{r} row_ror:8 row_mask:0xf bank_mask:0xf")
        h(f"v_mov_b32 v{t}, v{r}")
        h("s_nop 1")
        h(f"v_permlane16_swap_b32 v{r}, v{t}")
        h(f"{op} v{r}, v{r}, v{t}")
        h(f"v_mov_b32 v{t}, v{r}")
        h("s_nop 1")
        h(f"v_permlane32_swap_b32 v{r}, v{t}")
        h(f"{op} v{r}, v{r}, v{t}")
    allred_h("v_add_f32", 208, 209)
    h("v_cvt_pk_bf16_f32 v208, v208, v208")
    h("v_and_b32 v208, s88, v208")
    h("v_mul_f32 v208, s87, v208")
    h("v_sub_f32 v208, 0, v208")
    h("v_exp_f32 v208, v208")
    h("s_nop 0")
    h("v_add_f32 v208, 1.0, v208")
    h("v_rcp_f32 v208, v208")
    h("s_nop 0")
    h("v_cvt_pk_bf16_f32 v208, v208, v208")
    h("v_and_b32 v208, s88, v208")
    h(f"v_mov_b32 v209, {C_GATE}")
    h("ds_write_b32 v209, v208")
    if stamps:
        h("s_waitcnt lgkmcnt(0)")
        h("s_mov_b32 s93, s94")
        h("s_memrealtime s[94:95]")
        h("s_waitcnt lgkmcnt(0)")
        h("s_mov_b32 s95, s94")
        h("s_mov_b32 s94, s93")
    h("s_branch L_streamA")

    h.label("L_glu2")
    srd(h, 76, 38, 256)
    h("v_and_b32 v50, 3, v0")
    h("v_bfe_u32 v51, v0, 2, 1")
    h("v_lshl_add_u32 v50, v51, 5, v50")
    h("v_lshlrev_b32 v50, 2, v50")
    h("v_lshrrev_b32 v55, 4, v0")
    h("v_and_b32 v59, 15, v0")
    h("v_mul_u32_u24 v52, 7168, v59")
    h("v_lshl_add_u32 v52, v55, 5, v52")
    h("v_lshlrev_b32 v53, 17, v59")
    h("v_lshl_add_u32 v53, v55, 4, v53")
    h("v_bfe_u32 v54, v0, 2, 2")
    h("v_lshl_add_u32 v54, v55, 3, v54")
    h("v_and_b32 v56, 3, v0")
    h("v_lshlrev_b32 v54, 7, v54")
    h("v_lshl_add_u32 v54, v56, 3, v54")
    h(f"v_add_u32 v54, {T_WD}, v54")
    h("s_mul_i32 s64, s90, 224")
    h(f"s_add_u32 s64, s64, {WS_G}")
    h(f"s_add_u32 s65, s64, {114688}")
    h(f"s_add_u32 s66, s64, {2*114688}")
    h(f"s_add_u32 s67, s64, {3*114688}")
    h(f"s_mov_b32 s85, {spin}")
    h.label("L_ph")
    h("buffer_load_dword v57, v50, s[76:79], 0 offen sc1")
    h("s_waitcnt vmcnt(0)")
    h("v_cmp_ne_u32 s[86:87], 32, v57")
    h("s_sub_u32 s85, s85, 1")
    h("s_cmp_eq_u32 s85, 0")
    h("s_cbranch_scc1 L_ph_ok")
    h("s_cmp_eq_u64 s[86:87], 0")
    h("s_cbranch_scc1 L_ph_ok")
    h("s_sleep 30")
    h("s_branch L_ph")
    h.label("L_ph_ok")
    hstamp(2)
    GR = 160
    for kq in range(4):
        for kk in range(2):
            r = GR + (kq * 2 + kk) * 8
            h(f"buffer_load_dwordx4 v[{r}:{r+3}], v52, s[12:15], s{64+kq} offen offset:{kk*128} sc1")
            h(f"buffer_load_dwordx4 v[{r+4}:{r+7}], v52, s[12:15], s{64+kq} offen offset:{kk*128+16} sc1")
    h("s_cmp_lg_u32 s2, 0")
    h("s_cbranch_scc1 L_noep")
    h("v_mov_b32 v56, s70"); h("v_mov_b32 v57, s71"); h(f"v_mov_b32 v58, {WS_EP}")
    h("s_mov_b64 exec, 1")
    h("buffer_store_dwordx2 v[56:57], v58, s[12:15], 0 offen sc1")
    h("s_mov_b64 exec, -1")
    h.label("L_noep")
    h("s_mov_b32 s88, 0xffff0000")
    h(f"s_mov_b32 s87, {LOG2E}")
    h("s_waitcnt vmcnt(0)")
    A0, A1, A2, A3 = GR, GR + 16, GR + 32, GR + 48
    for c in range(16):
        h(f"v_add_f32 v{A0+c}, v{A0+c}, v{A1+c}")
        h(f"v_add_f32 v{A2+c}, v{A2+c}, v{A3+c}")
    for c in range(16):
        h(f"v_add_f32 v{A0+c}, v{A0+c}, v{A2+c}")
    for c in range(8):
        h(f"v_cvt_pk_bf16_f32 v{A1+c}, v{A0+2*c}, v{A0+1+2*c}")
    h("s_nop 1")
    for c in range(8):
        h(f"v_mov_b32_dpp v{A1+8+c}, v{A1+c} row_ror:8 row_mask:0xf bank_mask:0xf")
    for c in range(8):
        h(f"v_lshlrev_b32 v{A0+2*c}, 16, v{A1+c}"); h(f"v_and_b32 v{A0+1+2*c}, s88, v{A1+c}")
        h(f"v_lshlrev_b32 v{A2+2*c}, 16, v{A1+8+c}"); h(f"v_and_b32 v{A2+1+2*c}, s88, v{A1+8+c}")
    for c in range(16):
        h(f"v_mul_f32 v{A0+c}, s87, v{A0+c}")
        h(f"v_sub_f32 v{A0+c}, 0, v{A0+c}")
        h(f"v_exp_f32 v{A0+c}, v{A0+c}")
    for c in range(16):
        h(f"v_add_f32 v{A0+c}, 1.0, v{A0+c}")
    for c in range(16):
        h(f"v_rcp_f32 v{A0+c}, v{A0+c}")
    h("s_nop 0")
    for c in range(8):
        h(f"v_cvt_pk_bf16_f32 v{A1+c}, v{A0+2*c}, v{A0+1+2*c}")
        h(f"v_lshlrev_b32 v{A0+2*c}, 16, v{A1+c}"); h(f"v_and_b32 v{A0+1+2*c}, s88, v{A1+c}")
    for c in range(16):
        h(f"v_mul_f32 v{A0+c}, v{A0+c}, v{A2+c}")
    for c in range(8):
        h(f"v_cvt_pk_bf16_f32 v{A1+c}, v{A0+2*c}, v{A0+1+2*c}")
    h("s_mov_b32 s92, 0xff00ff00")
    h("s_mov_b32 s93, 0xff00ff00")
    h("s_mov_b64 exec, s[92:93]")
    for c in range(4):
        h(f"v_mov_b32 v{A1+c}, 0")
    h("s_mov_b32 s93, 0xffffff00")
    h("s_mov_b64 exec, s[92:93]")
    for c in range(4):
        h(f"v_mov_b32 v{A1+4+c}, 0")
    h("s_mov_b64 exec, -1")
    h("s_nop 1")
    proj(h, 54, 0, 2, A1, A2, GR + 64)
    h("s_add_u32 s92, s58, 4096")
    h("s_add_u32 s93, s58, 8192")
    h("s_add_u32 s86, s58, 12288")
    h("s_mov_b64 exec, s[60:61]")
    h("s_nop 4")
    for nt, sr in enumerate((58, 92, 93, 86)):
        h(f"buffer_store_dwordx4 v[{A2+4*nt}:{A2+3+4*nt}], v53, s[12:15], s{sr} offen offset:2048 sc1")
    h("s_mov_b64 exec, -1")
    h("s_branch L_glu2_ret")

    src = HEADER_COMMENT
    src += f"; @launch grid=(256,1,1) block=(512,1,1) lds={LDS_TOTAL}\n"
    src += '.amdgcn_target "amdgcn-amd-amdhsa--gfx950"\n.text\n'
    src += f".globl {KN}\n.p2align 8\n.type {KN},@function\n{KN}:\n"
    src += e.text() + "\n" + h.text() + "\nL_done:\n    s_endpgm\n"
    src += f""".section .rodata,"a"
.p2align 6
.amdhsa_kernel {KN}
  .amdhsa_next_free_vgpr 256
  .amdhsa_next_free_sgpr 102
  .amdhsa_accum_offset 256
  .amdhsa_group_segment_fixed_size 0
  .amdhsa_kernarg_size 104
  .amdhsa_user_sgpr_count 2
  .amdhsa_user_sgpr_kernarg_segment_ptr 1
  .amdhsa_system_sgpr_workgroup_id_x 1
.end_amdhsa_kernel
"""
    return src


if __name__ == "__main__":
    import argparse
    ap = argparse.ArgumentParser()
    ap.add_argument("out")
    ap.add_argument("--D", type=int, default=4)
    ap.add_argument("--NB", type=int, default=32)
    ap.add_argument("--LAG", type=int, default=20)
    ap.add_argument("--wnt", default="nt")
    ap.add_argument("--dump", default=None)
    ap.add_argument("--stamps", action="store_true")
    a = ap.parse_args()
    open(a.out, "w").write(gen(D=a.D, NB=a.NB, LAG=a.LAG, wnt=a.wnt, dump=a.dump, stamps=a.stamps))
```

```python
import sys

KN = "gated_mix__gqa_block_cached__glu_gated_glu__decode_kernel"

HEADER_COMMENT = """; Kernarg layout for this problem (104 bytes, ptrs only, base s[0:1]):
"""

WS_Q = 0x0
WS_G = 0x100000
WS_PO = 0x180000
WS_PS = 0x200000
WS_EP = 0x208000
WS_PA = 0x280000
WS_SIZE = 0x380000
WS_DUMP = 0x1000000
WS_STAMP = 0x2000000

RING = 16384
LDS_A = 131072
LDS_B = 147456
LDS_Q = LDS_B + 0
LDS_OB = LDS_B + 2048
LDS_TOTAL = 163840


class E:
    def __init__(self):
        self.o = []
        self.q = []
        self.lab = 0

    def __call__(self, s):
        self.o.append(s)

    def label(self, name):
        self.o.append(name + ":")

    def newlab(self, p="L"):
        self.lab += 1
        return f"{p}_{self.lab}"

    def vm(self, tag, s):
        self.o.append(s)
        self.q.append(tag)

    def wait_tag(self, tag):
        if tag not in self.q:
            return
        i = self.q.index(tag)
        n = len(self.q) - 1 - i
        self.o.append(f"s_waitcnt vmcnt({min(n, 63)})")
        self.q = self.q[i + 1:]

    def wait_all(self):
        self.o.append("s_waitcnt vmcnt(0)")
        self.q = []

    def text(self):
        return "\n".join(("    " + x) if not x.endswith(":") else x for x in self.o)


def srd(e, d, lo, size):
    e(f"s_mov_b32 s{d}, s{lo}")
    e(f"s_and_b32 s{d+1}, s{lo+1}, 0xffff")
    e(f"s_mov_b32 s{d+2}, {size}")
    e(f"s_mov_b32 s{d+3}, 0x20000")


LOG2E = 0x3fb8aa3b
SCALE = 0x3db504f3
SENT = 0xffffffff


def gen(D=4, NB=32, LAG=20, wnt="nt", dump=None, stamps=False, spin=200000, poll_sleep=1, dbgtime=False):
    e = E()
    T_WQ = 2 * RING
    T_GU = 3 * RING
    T_WD = LDS_B + 8192
    T_WO = LDS_A
    C_FLAG = LDS_B + 0
    C_CNT = LDS_B + 4
    C_GATE = LDS_B + 16
    L_Q = LDS_B + 1024
    L_ST = LDS_B + 2048
    L_WT = LDS_B + 2304
    L_OB = LDS_B + 4096
    OSTR = 576

    e("s_cmp_ge_u32 s2, 256")
    e("s_cbranch_scc1 L_done")
    if stamps or dbgtime:
        e("s_memrealtime s[96:97]")
    e("s_load_dwordx16 s[16:31], s[0:1], 0")
    e("s_load_dwordx8 s[32:39], s[0:1], 64")
    e("s_load_dwordx2 s[40:41], s[0:1], 96")
    e("v_lshrrev_b32 v1, 6, v0")
    e("v_and_b32 v0, 63, v0")
    e("v_readfirstlane_b32 s3, v1")
    e("v_and_b32 v50, 3, v0")
    e("v_bfe_u32 v51, v0, 2, 2")
    e("v_lshrrev_b32 v52, 4, v0")
    e("v_lshlrev_b32 v1, 4, v50")
    e("v_lshl_add_u32 v1, v51, 8, v1")
    e("v_lshl_add_u32 v1, v52, 6, v1")
    e("v_and_b32 v53, 15, v0")
    e("v_and_b32 v54, 1, v52")
    e("v_lshlrev_b32 v54, 1, v54")
    e("v_xor_b32 v53, v53, v54")
    for n in range(4):
        e(f"v_xor_b32 v55, {n*4}, v53")
        e(f"v_lshlrev_b32 v55, 4, v55")
        e(f"v_lshl_add_u32 v{2+n}, v52, 8, v55")
    e("v_lshl_add_u32 v55, v51, 2, v52")
    e("v_lshlrev_b32 v55, 8, v55")
    e("v_lshl_add_u32 v55, v50, 3, v55")
    e("s_lshl_b32 s80, s3, 14")
    e("v_add_u32 v55, s80, v55")
    e("v_and_b32 v56, 1, v52")
    e("v_lshl_add_u32 v56, v51, 1, v56")
    for dt in range(8):
        e(f"v_xor_b32 v57, {dt}, v56")
        e(f"v_lshl_add_u32 v{6+dt}, v57, 5, v55")
    e("s_waitcnt lgkmcnt(0)")
    srd(e, 4, 18, 128 << 20)
    srd(e, 8, 20, 128 << 20)
    srd(e, 12, 40, (WS_STAMP + (1 << 20)) if (dump or stamps) else WS_SIZE)
    e("s_lshl_b32 s81, s2, 19")
    e("s_lshl_b32 s82, s3, 12")
    e("s_add_u32 s81, s81, s82")
    e("s_mov_b64 vcc, 0")
    e("s_cmp_eq_u32 s3, 0")
    e("s_cbranch_scc1 L_helper")

    KREG = lambda n: 64 + 4 * (n % 48)

    def sstamp(k):
        if stamps:
            e("s_memrealtime s[98:99]"); e("s_waitcnt lgkmcnt(0)"); e(f"s_mov_b32 s{44+k}, s98")
    state = dict(I=0)

    def pace():
        l = e.newlab("P")
        e(f"s_cbranch_vccnz {l}")
        e(f"s_waitcnt vmcnt({D-1})")
        e.label(l)

    def issue(paced=True):
        i = state["I"]
        state["I"] += 1
        if paced:
            pace()
        if i < 64:
            u, r = divmod(i, 4)
            if r == 0:
                e(f"s_add_u32 s83, s81, {u * 32768}")
            k = KREG(i)
            e.vm(("K", i), f"buffer_load_dwordx4 v[{k}:{k+3}], v1, s[4:7], s83 offen offset:{r*1024} nt")
        else:
            j = i - 64
            u, r = divmod(j, 4)
            if r == 0:
                e(f"s_add_u32 s84, s81, {u * 32768}")
                e(f"s_add_u32 m0, s80, {(u % 4) * 4096}")
                e("s_nop 0")
            e.vm(("V", j), f"buffer_load_dwordx4 v{2+r}, s[8:11], s84 offen offset:{r*1024} nt lds")

    e("s_barrier")
    e.label("L_streamA")
    while state["I"] < NB:
        issue()
    sstamp(0)
    e(f"v_mov_b32 v50, {C_FLAG}")
    e(f"s_mov_b32 s85, {spin}")
    e.label("L_qwait")
    e("ds_read_b32 v51, v50")
    e("s_waitcnt lgkmcnt(0)")
    e("v_readfirstlane_b32 s86, v51")
    e("s_sub_u32 s85, s85, 1")
    e("s_cmp_eq_u32 s85, 0")
    e("s_cbranch_scc1 L_qok")
    e("s_cmp_lg_u32 s86, 0")
    e("s_cbranch_scc1 L_qok")
    e("s_sleep 2")
    e("s_branch L_qwait")
    e.label("L_qok")
    e("v_lshlrev_b32 v50, 4, v0")
    e(f"ds_read_b128 v[14:17], v50 offset:{L_Q - 0x20000}") if False else None
    e(f"v_add_u32 v50, {L_Q}, v50")
    e("ds_read_b128 v[14:17], v50")
    e("s_waitcnt lgkmcnt(0)")

    sstamp(1)
    DB = [18, 22, 26, 30, 50, 54]
    DREG = lambda n: DB[n % 6]

    def mfma_k(n):
        e.wait_tag(("K", n))
        k = KREG(n); d = DREG(n)
        e(f"v_mfma_f32_16x16x32_bf16 v[{d}:{d+3}], v[{k}:{k+3}], v[14:17], 0")

    def dpp_k(n, j):
        if n < 0 or n > 63:
            return False
        d = DREG(n)
        blk, rem = divmod(n, 32)
        t, ee = divmod(rem, 8)
        R = 34 + blk * 8 + ee
        if j == 0:
            e(f"v_mov_b32_dpp v{R}, v{d+t} quad_perm:[0,1,2,3] row_mask:0xf bank_mask:{1<<t}")
        else:
            v = (t + j) % 4
            e(f"v_add_f32_dpp v{R}, v{d+v}, v{R} row_ror:{(4*(t-v)) % 16} row_mask:0xf bank_mask:{1<<t}")
        return True

    C = 0

    def consume():
        nonlocal C
        if C < 64:
            mfma_k(C)
        else:
            e("s_nop 0")
        for j in range(4):
            if not dpp_k(C - 2 - j, j):
                e("s_nop 0")
        C += 1

    while C < 64:
        I = state["I"]
        can = (I < 64 and I < C + 48) or (64 <= I < 80)
        if can:
            issue()
        consume()
        if C < 64 and (state["I"] - C > LAG or not can):
            consume()
    while state["I"] < 80:
        issue()
    while C < 70:
        consume()

    if dump == "S":
        e("s_lshl_b32 s86, s2, 3"); e("s_add_u32 s86, s86, s3"); e("s_lshl_b32 s86, s86, 12"); e(f"s_add_u32 s86, s86, {WS_DUMP}")
        e("v_lshlrev_b32 v50, 2, v0")
        for r in range(16):
            e.vm(("dump", r), f"buffer_store_dword v{34+r}, v50, s[12:15], s86 offen offset:{r*256}")

    sstamp(2)
    e(f"s_mov_b32 s86, {SCALE}")
    e(f"s_mov_b32 s87, {LOG2E}")
    e("s_mov_b32 s88, 0xffff0000")
    for p in range(8):
        a, b = 34 + 2 * p, 35 + 2 * p
        t = 50 + (p % 4)
        e(f"v_cvt_pk_bf16_f32 v{t}, v{a}, v{b}")
        e(f"v_lshlrev_b32 v{a}, 16, v{t}")
        e(f"v_and_b32 v{b}, s88, v{t}")
        e(f"v_mul_f32 v{a}, s86, v{a}")
        e(f"v_mul_f32 v{b}, s86, v{b}")
        e(f"v_cvt_pk_bf16_f32 v{t}, v{a}, v{b}")
        e(f"v_lshlrev_b32 v{a}, 16, v{t}")
        e(f"v_and_b32 v{b}, s88, v{t}")
    e("v_max3_f32 v50, v34, v35, v36")
    e("v_max3_f32 v51, v37, v38, v39")
    e("v_max3_f32 v52, v40, v41, v42")
    e("v_max3_f32 v53, v43, v44, v45")
    e("v_max3_f32 v50, v50, v46, v47")
    e("v_max3_f32 v51, v51, v48, v49")
    e("v_max3_f32 v50, v50, v51, v52")
    e("v_max_f32 v50, v50, v53")

    def allred(op, r, t):
        e("s_nop 1")
        e(f"{op}_dpp v{r}, v{r}, v{r} row_ror:4 row_mask:0xf bank_mask:0xf")
        e("s_nop 1")
        e(f"{op}_dpp v{r}, v{r}, v{r} row_ror:8 row_mask:0xf bank_mask:0xf")
        e(f"v_mov_b32 v{t}, v{r}")
        e("s_nop 1")
        e(f"v_permlane16_swap_b32 v{r}, v{t}")
        e(f"{op} v{r}, v{r}, v{t}")
        e(f"v_mov_b32 v{t}, v{r}")
        e("s_nop 1")
        e(f"v_permlane32_swap_b32 v{r}, v{t}")
        e(f"{op} v{r}, v{r}, v{t}")

    allred("v_max_f32", 50, 51)
    e("v_mul_f32 v52, s87, v50")
    e("v_sub_f32 v52, 0, v52")
    for r in range(16):
        e(f"v_fma_f32 v{34+r}, v{34+r}, s87, v52")
    for r in range(16):
        e(f"v_exp_f32 v{34+r}, v{34+r}")
    e("s_nop 0")
    for p in range(8):
        e(f"v_cvt_pk_bf16_f32 v{18+p}, v{34+2*p}, v{35+2*p}")
    e("v_add_f32 v51, v34, v35")
    for r in range(2, 16):
        e(f"v_add_f32 v51, v51, v{34+r}")
    allred("v_add_f32", 51, 53)
    e("s_lshl_b32 s86, s3, 5")
    e(f"s_add_u32 s86, s86, {L_ST}")
    e("v_lshlrev_b32 v53, 3, v0")
    e("v_add_u32 v53, s86, v53")
    e(f"v_mov_b32 v54, {C_CNT}")
    e("v_mov_b32 v55, 1")
    e("s_mov_b64 exec, 0xf")
    e("ds_write_b64 v53, v[50:51]")
    e("s_waitcnt lgkmcnt(0)")
    e("s_mov_b64 exec, 1")
    e("ds_add_rtn_u32 v56, v54, v55")
    e("s_mov_b64 exec, -1")
    ACC = 64
    for r in range(32):
        e(f"v_mov_b32 v{ACC+r}, 0")
    e("s_waitcnt lgkmcnt(0)")
    e("v_readfirstlane_b32 s86, v56")
    e("s_cmp_lg_u32 s86, 7")
    e("s_cbranch_scc1 L_nostats")
    e("v_and_b32 v53, 31, v0")
    e("v_lshlrev_b32 v53, 3, v53")
    e(f"v_add_u32 v53, {L_ST}, v53")
    e("ds_read_b64 v[54:55], v53")
    e("s_waitcnt lgkmcnt(0)")
    e("v_mov_b32 v56, v54")
    allred("v_max_f32", 56, 57)
    e("v_sub_f32 v57, v54, v56")
    e("v_mul_f32 v57, s87, v57")
    e("v_exp_f32 v57, v57")
    e("s_nop 0")
    e("v_mul_f32 v58, v57, v55")
    allred("v_add_f32", 58, 59)
    e("v_mul_f32 v58, 0.5, v58")
    e("v_and_b32 v59, 3, v0")
    e("v_lshlrev_b32 v59, 5, v59")
    e("v_bfe_u32 v60, v0, 2, 3")
    e("v_lshl_add_u32 v59, v60, 2, v59")
    e(f"v_add_u32 v59, {L_WT}, v59")
    e("ds_write_b32 v59, v57")
    e("s_bfe_u32 s86, s2, 0x30002")
    e("s_lshl_b32 s86, s86, 10")
    e("s_lshr_b32 s88, s2, 5")
    e("s_lshl_b32 s88, s88, 5")
    e("s_add_u32 s86, s86, s88")
    e("s_and_b32 s88, s2, 3")
    e("s_lshl_b32 s88, s88, 3")
    e("s_add_u32 s86, s86, s88")
    e(f"s_add_u32 s86, s86, {WS_PS}")
    e("v_lshlrev_b32 v59, 8, v0")
    e("v_mov_b32 v57, v58")
    e("s_mov_b64 exec, 0xf")
    e("buffer_store_dwordx2 v[56:57], v59, s[12:15], s86 offen sc1")
    e("s_mov_b64 exec, -1")
    e.label("L_nostats")
    e("s_cbranch_vccnz L_glu2")
    e.label("L_glu2_ret")

    sstamp(3)
    AREG = lambda k, dt: 96 + (k % 2) * 32 + dt * 4
    BT = lambda k: 26 + (k % 2) * 4
    for u in range(16):
        k, hf = divmod(u, 2)
        blk, t = divmod(k, 4)
        if u in (4, 8, 12):
            sstamp(3 + u // 4)
        if hf == 0:
            if t != 0:
                for r in range(4):
                    e(f"v_mov_b32_dpp v{BT(k)+r}, v{18+blk*4+r} row_ror:{(16-4*t) % 16} row_mask:0xf bank_mask:0xf")
        e.wait_tag(("V", 4 * u + 3))
        for dt in range(8):
            a = AREG(k, dt) + 2 * hf
            e(f"ds_read_b64_tr_b16 v[{a}:{a+1}], v{6+dt} offset:{(u % 4) * 4096}")
        if u + 4 < 16:
            e("s_waitcnt lgkmcnt(0)")
            for _ in range(4):
                issue()
        if hf == 1:
            b = (18 + blk * 4) if t == 0 else BT(k)
            for dt in range(8):
                a = AREG(k, dt)
                if u + 4 >= 16:
                    e(f"s_waitcnt lgkmcnt({7-dt})")
                e(f"v_mfma_f32_16x16x32_bf16 v[{ACC+4*dt}:{ACC+4*dt+3}], v[{a}:{a+3}], v[{b}:{b+3}], v[{ACC+4*dt}:{ACC+4*dt+3}]")
    assert state["I"] == 128
    e("v_and_b32 v50, 3, v0")
    e(f"v_mul_u32_u24 v50, {OSTR}, v50")
    e("v_lshrrev_b32 v51, 4, v0")
    e("v_lshl_add_u32 v50, v51, 4, v50")
    e("v_add_u32 v50, s80, v50")
    e("s_mov_b32 s86, 0x000f000f")
    e("s_mov_b32 s87, 0x000f000f")
    e("s_mov_b64 exec, s[86:87]")
    e("s_nop 1")
    for dt in range(8):
        e(f"ds_write_b128 v50, v[{ACC+4*dt}:{ACC+4*dt+3}] offset:{dt*64}")
    e("s_mov_b64 exec, -1")
    e("s_waitcnt lgkmcnt(0)")
    if stamps or dbgtime:
        e("s_memrealtime s[98:99]")
    e("s_barrier")
    e("s_cmp_ge_u32 s3, 4")
    e("s_cbranch_scc1 L_hop1")
    e("s_cmp_ge_u32 s3, 2")
    e("s_cbranch_scc1 L_fin")
    e("v_lshrrev_b32 v50, 5, v0")
    e("s_lshl_b32 s86, s3, 1")
    e("v_add_u32 v50, s86, v50")
    e("v_and_b32 v51, 31, v0")
    e(f"v_mul_u32_u24 v52, {OSTR}, v50")
    e("v_lshl_add_u32 v52, v51, 4, v52")
    e("v_lshlrev_b32 v53, 5, v50")
    e(f"v_add_u32 v53, {L_WT}, v53")
    e("v_add_u32 v54, 0x10000, v52")
    e("ds_read_b128 v[96:99], v53")
    e("ds_read_b128 v[100:103], v53 offset:16")
    for w in range(8):
        e(f"ds_read_b128 v[{64+4*w}:{67+4*w}], v{52 if w < 4 else 54} offset:{(w % 4) * RING}")
    e("s_bfe_u32 s86, s2, 0x30002")
    e("s_lshl_b32 s86, s86, 16")
    e("s_lshr_b32 s88, s2, 5")
    e("s_lshl_b32 s88, s88, 11")
    e("s_add_u32 s86, s86, s88")
    e("s_and_b32 s88, s2, 3")
    e("s_lshl_b32 s88, s88, 9")
    e("s_add_u32 s86, s86, s88")
    e(f"s_add_u32 s86, s86, {WS_PO}")
    e("v_lshlrev_b32 v55, 14, v50")
    e("v_lshl_add_u32 v55, v51, 4, v55")
    e("s_waitcnt lgkmcnt(7)")
    for c in range(4):
        e(f"v_mul_f32 v{104+c}, v96, v{64+c}")
    for w in range(1, 8):
        e(f"s_waitcnt lgkmcnt({7-w})")
        for c in range(4):
            e(f"v_fmac_f32 v{104+c}, v{96+w}, v{64+4*w+c}")
    e("buffer_store_dwordx4 v[104:107], v55, s[12:15], s86 offen sc1")
    e("s_branch L_fin")

    e.label("L_hop1")
    e("s_sub_u32 s89, s3, 4")
    e("s_lshr_b32 s90, s2, 3")
    e("v_lshrrev_b32 v50, 5, v0")
    e("s_lshl_b32 s86, s89, 1")
    e("v_add_u32 v50, s86, v50")
    e("v_and_b32 v51, 31, v0")
    e("v_lshlrev_b32 v52, 5, v50")
    e("s_lshl_b32 s91, s90, 8")
    e(f"s_add_u32 s91, s91, {WS_PS}")
    e("v_lshlrev_b32 v53, 11, v50")
    e("v_lshl_add_u32 v53, v51, 4, v53")
    e("s_lshl_b32 s92, s90, 14")
    e(f"s_add_u32 s92, s92, {WS_PO}")
    e(f"s_mov_b32 s85, {spin}")
    e.label("L_h1s")
    e("buffer_load_dwordx4 v[64:67], v52, s[12:15], s91 offen sc1")
    e("buffer_load_dwordx4 v[68:71], v52, s[12:15], s91 offen offset:16 sc1")
    for s in range(4):
        e(f"buffer_load_dwordx4 v[{72+4*s}:{75+4*s}], v53, s[12:15], s92 offen offset:{s*512} sc1")
    e("v_lshrrev_b32 v54, 4, v0")
    e("v_bfe_u32 v55, v0, 2, 2")
    e("v_lshl_add_u32 v54, v54, 3, v55")
    e("v_lshlrev_b32 v54, 7, v54")
    e("v_and_b32 v55, 3, v0")
    e("v_lshl_add_u32 v54, v55, 3, v54")
    e("s_lshl_b32 s86, s89, 5")
    e(f"s_add_u32 s86, s86, {T_WO}")
    e("v_add_u32 v54, s86, v54")
    for kk in range(4):
        for hf in range(2):
            a = 160 + kk * 4 + hf * 2
            e(f"ds_read_b64_tr_b16 v[{a}:{a+1}], v54 offset:{(32*kk+4*hf)*128}")
    e("s_waitcnt vmcnt(4)")
    e("v_max3_u32 v56, v64, v65, v66")
    e("v_max3_u32 v56, v56, v67, v68")
    e("v_max3_u32 v56, v56, v69, v70")
    e("v_max_u32 v56, v56, v71")
    e("v_cmp_eq_u32 s[86:87], -1, v56")
    e("s_sub_u32 s85, s85, 1")
    e("s_cmp_eq_u32 s85, 0")
    e("s_cbranch_scc1 L_h1s_ok")
    e("s_cmp_eq_u64 s[86:87], 0")
    e("s_cbranch_scc1 L_h1s_ok")
    e("s_waitcnt vmcnt(0) lgkmcnt(0)")
    e(f"s_sleep {poll_sleep}")
    e("s_branch L_h1s")
    e.label("L_h1s_ok")
    e(f"s_mov_b32 s87, {LOG2E}")
    e("v_max3_f32 v56, v64, v66, v68")
    e("v_max_f32 v56, v56, v70")
    for s in range(4):
        e(f"v_sub_f32 v{64+2*s}, v{64+2*s}, v56")
        e(f"v_mul_f32 v{64+2*s}, s87, v{64+2*s}")
        e(f"v_exp_f32 v{64+2*s}, v{64+2*s}")
    e("s_nop 0")
    e("v_mul_f32 v57, v64, v65")
    for s in range(1, 4):
        e(f"v_fmac_f32 v57, v{64+2*s}, v{65+2*s}")
    e("v_rcp_f32 v57, v57")
    e("s_nop 0")
    for s in range(4):
        e(f"v_mul_f32 v{64+2*s}, v{64+2*s}, v57")
    e("s_branch L_h1o_chk")
    e.label("L_h1o")
    e(f"s_sleep {poll_sleep}")
    for s in range(4):
        e(f"buffer_load_dwordx4 v[{72+4*s}:{75+4*s}], v53, s[12:15], s92 offen offset:{s*512} sc1")
    e.label("L_h1o_chk")
    e("s_waitcnt vmcnt(0)")
    e("v_max3_u32 v56, v72, v73, v74")
    e("v_max3_u32 v57, v75, v76, v77")
    e("v_max3_u32 v58, v78, v79, v80")
    e("v_max3_u32 v59, v81, v82, v83")
    e("v_max3_u32 v56, v56, v84, v85")
    e("v_max3_u32 v57, v57, v86, v87")
    e("v_max3_u32 v56, v56, v57, v58")
    e("v_max_u32 v56, v56, v59")
    e("v_cmp_eq_u32 s[86:87], -1, v56")
    e("s_sub_u32 s85, s85, 1")
    e("s_cmp_eq_u32 s85, 0")
    e("s_cbranch_scc1 L_h1o_ok")
    e("s_cmp_eq_u64 s[86:87], 0")
    e("s_cbranch_scc0 L_h1o")
    e.label("L_h1o_ok")
    for c in range(4):
        e(f"v_mul_f32 v{88+c}, v64, v{72+c}")
    for s in range(1, 4):
        for c in range(4):
            e(f"v_fmac_f32 v{88+c}, v{64+2*s}, v{72+4*s+c}")
    e("v_cvt_pk_bf16_f32 v88, v88, v89")
    e("v_cvt_pk_bf16_f32 v89, v90, v91")
    e("v_mul_u32_u24 v56, 272, v50")
    e("v_lshl_add_u32 v56, v51, 3, v56")
    e(f"v_add_u32 v56, {L_OB}, v56")
    e("ds_write_b64 v56, v[88:89]")
    e("v_and_b32 v57, 7, v0")
    e("v_mul_u32_u24 v57, 272, v57")
    e("v_lshrrev_b32 v58, 4, v0")
    e("v_lshl_add_u32 v57, v58, 4, v57")
    e(f"v_add_u32 v57, {L_OB}, v57")
    e("v_and_b32 v59, 15, v0")
    e("v_lshlrev_b32 v59, 17, v59")
    e("v_lshl_add_u32 v59, v58, 4, v59")
    e("s_and_b32 s86, s2, 7")
    e("s_lshl_b32 s86, s86, 2")
    e("s_add_u32 s86, s86, s89")
    e("s_lshl_b32 s86, s86, 12")
    e("s_lshl_b32 s88, s90, 6")
    e("s_add_u32 s86, s86, s88")
    e(f"s_add_u32 s86, s86, {WS_PA}")
    e("s_waitcnt lgkmcnt(0)")
    e("s_barrier")
    for kk in range(4):
        e(f"ds_read_b128 v[{72+4*kk}:{75+4*kk}], v57 offset:{kk*64}")
    for kk in range(4):
        e(f"s_waitcnt lgkmcnt({3-kk})")
        c = "0" if kk == 0 else "v[88:91]"
        e(f"v_mfma_f32_16x16x32_bf16 v[88:91], v[{160+4*kk}:{163+4*kk}], v[{72+4*kk}:{75+4*kk}], {c}")
    e("s_mov_b32 s92, 0x00ff00ff")
    e("s_mov_b32 s93, 0x00ff00ff")
    e("s_mov_b64 exec, s[92:93]")
    e("s_nop 5")
    e("buffer_store_dwordx4 v[88:91], v59, s[12:15], s86 offen sc1")
    e("s_mov_b64 exec, -1")
    e("s_cmp_lg_u32 s3, 4")
    e("s_cbranch_scc1 L_fin")

    e("s_lshl_b32 s86, s2, 12")
    e(f"s_add_u32 s86, s86, {WS_PA}")
    e("v_lshlrev_b32 v50, 4, v0")
    e(f"v_mov_b32 v52, {C_GATE}")
    e("ds_read_b32 v53, v52")
    e(f"s_mov_b32 s85, {spin}")
    e("s_branch L_h2_ld")
    e.label("L_h2")
    e(f"s_sleep {poll_sleep}")
    e.label("L_h2_ld")
    e("buffer_load_dwordx4 v[64:67], v50, s[12:15], s86 offen sc1")
    e("buffer_load_dwordx4 v[68:71], v50, s[12:15], s86 offen offset:1024 sc1")
    e("buffer_load_dwordx4 v[72:75], v50, s[12:15], s86 offen offset:2048 sc1")
    e("buffer_load_dwordx4 v[92:95], v50, s[12:15], s86 offen offset:3072 sc1")
    e("s_waitcnt vmcnt(0)")
    e("v_max3_u32 v56, v64, v65, v66")
    e("v_max3_u32 v57, v67, v68, v69")
    e("v_max3_u32 v58, v70, v71, v72")
    e("v_max3_u32 v56, v56, v73, v74")
    e("v_max3_u32 v57, v57, v58, v75")
    e("v_max3_u32 v56, v56, v92, v93")
    e("v_max3_u32 v57, v57, v94, v95")
    e("v_max_u32 v56, v56, v57")
    e("v_cmp_eq_u32 s[88:89], -1, v56")
    e("s_sub_u32 s85, s85, 1")
    e("s_cmp_eq_u32 s85, 0")
    e("s_cbranch_scc1 L_h2_ok")
    e("s_cmp_eq_u64 s[88:89], 0")
    e("s_cbranch_scc0 L_h2")
    e.label("L_h2_ok")
    for c in range(4):
        e(f"v_add_f32 v{64+c}, v{64+c}, v{68+c}")
        e(f"v_add_f32 v{72+c}, v{72+c}, v{92+c}")
    regs = [64, 65, 66, 67, 72, 73, 74, 75]
    e("s_nop 1")
    for r in regs:
        e(f"v_add_f32_dpp v{r}, v{r}, v{r} row_ror:4 row_mask:0xf bank_mask:0xf")
    for r in regs:
        e(f"v_add_f32_dpp v{r}, v{r}, v{r} row_ror:8 row_mask:0xf bank_mask:0xf")
    for r in regs:
        e(f"v_mov_b32 v{r+12}, v{r}")
    e("s_nop 1")
    for r in regs:
        e(f"v_permlane16_swap_b32 v{r}, v{r+12}")
    for r in regs:
        e(f"v_add_f32 v{r}, v{r}, v{r+12}")
    for r in regs:
        e(f"v_mov_b32 v{r+12}, v{r}")
    e("s_nop 1")
    for r in regs:
        e(f"v_permlane32_swap_b32 v{r}, v{r+12}")
    for r in regs:
        e(f"v_add_f32 v{r}, v{r}, v{r+12}")
    e("s_mov_b32 s88, 0xffff0000")
    e("s_waitcnt lgkmcnt(0)")
    e("v_sub_f32 v54, 1.0, v53")
    e("v_cvt_pk_bf16_f32 v54, v54, v54")
    e("v_and_b32 v54, s88, v54")

    def rnd2(a, b, t):
        e(f"v_cvt_pk_bf16_f32 v{t}, v{a}, v{b}")
        e(f"v_lshlrev_b32 v{a}, 16, v{t}")
        e(f"v_and_b32 v{b}, s88, v{t}")
    rnd2(64, 65, 56); rnd2(66, 67, 57); rnd2(72, 73, 58); rnd2(74, 75, 59)
    for c in range(4):
        e(f"v_mul_f32 v{64+c}, v53, v{64+c}")
        e(f"v_mul_f32 v{72+c}, v54, v{72+c}")
    rnd2(64, 65, 56); rnd2(66, 67, 57); rnd2(72, 73, 58); rnd2(74, 75, 59)
    for c in range(4):
        e(f"v_add_f32 v{64+c}, v{64+c}, v{72+c}")
    e("v_cvt_pk_bf16_f32 v64, v64, v65")
    e("v_cvt_pk_bf16_f32 v65, v66, v67")
    srd(e, 72, 36, 8192)
    e("s_lshl_b32 s86, s2, 5")
    e("v_lshlrev_b32 v50, 3, v0")
    e("s_mov_b64 exec, 0xf")
    e("buffer_store_dwordx2 v[64:65], v50, s[72:75], s86 offen")
    e("s_mov_b64 exec, -1")
    e.label("L_fin")
    if dbgtime:
        e("s_memrealtime s[100:101]")
        e("s_cmp_lg_u32 s3, 4"); e("s_cbranch_scc1 L_done")
        e("s_mul_i32 s86, s2, 9"); e("s_and_b32 s86, s86, 0x78"); e("s_cmp_lg_u32 s86, 0"); e("s_cbranch_scc1 L_done")
        srd(e, 76, 38, 256)
        e("s_waitcnt lgkmcnt(0)")
        e("s_not_b32 s96, s96")
        e("v_mov_b32 v64, s100"); e("v_mov_b32 v65, s96"); e("v_mov_b32 v66, s98"); e("v_mov_b32 v50, 0")
        e("s_mov_b64 exec, 1")
        e("buffer_atomic_umax v64, v50, s[76:79], 0 offen offset:16")
        e("buffer_atomic_umax v65, v50, s[76:79], 0 offen offset:20")
        e("buffer_atomic_umax v66, v50, s[76:79], 0 offen offset:24")
    if stamps:
        e("s_memrealtime s[100:101]")
        e("s_waitcnt lgkmcnt(0)")
        e("s_lshl_b32 s86, s2, 3"); e("s_add_u32 s86, s86, s3"); e("s_lshl_b32 s86, s86, 6"); e(f"s_add_u32 s86, s86, {WS_STAMP}")
        for k in range(8):
            e(f"v_mov_b32 v{72+k}, s{44+k}")
        e("v_mov_b32 v64, s96"); e("v_mov_b32 v65, s94"); e("v_mov_b32 v66, s95"); e("v_mov_b32 v67, s98")
        e("v_mov_b32 v68, s100"); e("v_mov_b32 v69, s72"); e("v_mov_b32 v70, s73"); e("v_mov_b32 v71, s74"); e("v_mov_b32 v50, 0")
        e("s_mov_b64 exec, 1")
        e("buffer_store_dwordx4 v[64:67], v50, s[12:15], s86 offen")
        e("buffer_store_dwordx4 v[68:71], v50, s[12:15], s86 offen offset:16")
        e("buffer_store_dwordx4 v[72:75], v50, s[12:15], s86 offen offset:32")
        e("buffer_store_dwordx4 v[76:79], v50, s[12:15], s86 offen offset:48")
    e("s_endpgm")

    h = E()
    h.lab = 10000
    h.label("L_helper")
    h(f"s_add_u32 s62, s40, {WS_EP}")
    h("s_addc_u32 s63, s41, 0")
    h("s_load_dwordx2 s[70:71], s[62:63], 0")
    h("s_mov_b64 vcc, -1")
    h(f"v_mov_b32 v50, {C_FLAG}")
    h("v_mov_b32 v52, 0"); h("v_mov_b32 v53, 0")
    h("ds_write_b64 v50, v[52:53]")
    srd(h, 48, 22, 4 << 20)
    srd(h, 44, 16, 8192)
    h("s_and_b32 s89, s2, 7")
    h("s_lshr_b32 s90, s2, 3")
    h("s_lshr_b32 s91, s2, 6")
    h("s_and_b32 s42, s90, 7")
    h("v_lshrrev_b32 v50, 3, v0")
    h("v_and_b32 v51, 7, v0")
    h("v_lshlrev_b32 v51, 4, v51")
    h("v_lshl_add_u32 v52, v50, 13, v51")
    h("v_lshl_add_u32 v53, v50, 10, v51")
    h("v_mul_u32_u24 v54, 3584, v50")
    h("v_add_u32 v54, v54, v51")
    h("v_lshrrev_b32 v55, 4, v0")

    def tile(tag, n, ldsbase, vo, sr, sreg, step):
        for i in range(n):
            h(f"s_mov_b32 m0, {ldsbase + i*1024}")
            if i:
                h(f"s_add_u32 s{sreg}, s{sreg}, {step}")
            else:
                h("s_nop 0")
            h.vm((tag, i), f"buffer_load_dwordx4 v{vo}, s[{sr}:{sr+3}], s{sreg} offen {wnt} lds")

    h("s_lshl_b32 s86, s91, 20")
    h("s_lshl_b32 s87, s89, 10")
    h("s_lshl_b32 s88, s42, 7")
    h("s_add_u32 s43, s87, s88")
    h("s_add_u32 s86, s86, s43")
    tile("wq", 16, T_WQ, 52, 48, 86, 0x10000)
    h("v_and_b32 v56, 7, v0")
    h("v_lshlrev_b32 v56, 10, v56")
    h("v_lshl_add_u32 v56, v55, 4, v56")
    h("s_lshl_b32 s86, s91, 8")
    XR = 64
    for kk in range(4):
        h.vm(("x", kk), f"buffer_load_dwordx4 v[{XR+4*kk}:{XR+4*kk+3}], v56, s[44:47], s86 offen offset:{kk*64}")
    h("s_waitcnt lgkmcnt(0)")
    h("s_barrier")
    h("s_add_u32 s70, s70, 1")
    h("s_add_u32 s71, s71, 0x9e3779b9")
    h("s_lshl_b32 s92, s89, 3")
    h("s_add_u32 s92, s92, s42")
    h("s_min_u32 s93, s92, 55")
    h("s_cmp_ge_u32 s93, 28")
    h("s_cselect_b32 s52, s30, s28")
    h("s_cselect_b32 s53, s31, s29")
    h("s_cselect_b32 s87, 28, 0")
    h("s_cselect_b32 s88, 1, 0")
    h("s_and_b32 s53, s53, 0xffff")
    h(f"s_mov_b32 s54, {512*3584}")
    h("s_mov_b32 s55, 0x20000")
    h("s_sub_u32 s93, s93, s87")
    h(f"s_mul_i32 s86, s91, {128*3584}")
    h("s_lshl_b32 s87, s93, 7")
    h("s_add_u32 s86, s86, s87")
    h("s_lshl_b32 s56, s91, 1")
    h("s_add_u32 s56, s56, s88")
    h(f"s_mul_i32 s56, s56, {8*7168}")
    h("s_lshl_b32 s87, s93, 8")
    h("s_add_u32 s56, s56, s87")
    h(f"s_add_u32 s56, s56, {WS_G}")
    h("s_mov_b32 s57, s92")
    tile("gu", 16, T_GU, 54, 52, 86, 8 * 3584)
    for r in range(4):
        h(f"v_mov_b32 v{56+r}, -1")
    h("s_bfe_u32 s86, s2, 0x30002")
    h("s_lshl_b32 s92, s86, 16")
    h("s_lshr_b32 s88, s2, 5")
    h("s_lshl_b32 s93, s88, 11")
    h("s_add_u32 s92, s92, s93")
    h("s_and_b32 s87, s2, 3")
    h("s_lshl_b32 s93, s87, 9")
    h("s_add_u32 s92, s92, s93")
    h(f"s_add_u32 s92, s92, {WS_PO}")
    h("v_lshrrev_b32 v60, 5, v0")
    h("v_lshlrev_b32 v60, 14, v60")
    h("v_and_b32 v61, 31, v0")
    h("v_lshl_add_u32 v60, v61, 4, v60")
    h.vm("c0", "buffer_store_dwordx4 v[56:59], v60, s[12:15], s92 offen sc1")
    h("s_add_u32 s92, s92, 0x8000")
    h.vm("c1", "buffer_store_dwordx4 v[56:59], v60, s[12:15], s92 offen sc1")
    h("s_lshl_b32 s92, s86, 10")
    h("s_lshl_b32 s93, s88, 5")
    h("s_add_u32 s92, s92, s93")
    h("s_lshl_b32 s93, s87, 3")
    h("s_add_u32 s92, s92, s93")
    h(f"s_add_u32 s92, s92, {WS_PS}")
    h("v_lshlrev_b32 v60, 8, v0")
    h("s_mov_b64 exec, 0xf")
    h.vm("c2", "buffer_store_dwordx2 v[56:57], v60, s[12:15], s92 offen sc1")
    h("s_mov_b64 exec, -1")
    h("v_lshlrev_b32 v60, 17, v50")
    h("v_bfe_u32 v61, v0, 2, 1")
    h("v_lshl_add_u32 v60, v61, 12, v60")
    h("v_and_b32 v61, 3, v0")
    h("v_lshl_add_u32 v60, v61, 4, v60")
    h("s_lshl_b32 s58, s89, 14")
    h("s_lshl_b32 s93, s90, 6")
    h("s_add_u32 s58, s58, s93")
    h(f"s_add_u32 s58, s58, {WS_PA}")
    h("s_add_u32 s92, s58, 8192")
    h.vm("c3", "buffer_store_dwordx4 v[56:59], v60, s[12:15], s58 offen sc1")
    h.vm("c4", "buffer_store_dwordx4 v[56:59], v60, s[12:15], s58 offen offset:2048 sc1")
    h.vm("c5", "buffer_store_dwordx4 v[56:59], v60, s[12:15], s92 offen sc1")
    h.vm("c6", "buffer_store_dwordx4 v[56:59], v60, s[12:15], s92 offen offset:2048 sc1")
    srd(h, 64, 34, 1024)
    h("v_lshlrev_b32 v61, 4, v0")
    h("s_lshr_b32 s86, s2, 5")
    h("s_lshl_b32 s86, s86, 10")
    h.vm("gx", "buffer_load_dwordx4 v[200:203], v61, s[44:47], s86 offen")
    h.vm("gw", "buffer_load_dwordx4 v[204:207], v61, s[64:67], 0 offen")
    srd(h, 76, 38, 256)
    h("v_bfe_u32 v50, v0, 2, 2")
    h("v_lshl_add_u32 v50, v55, 3, v50")
    h("v_and_b32 v51, 3, v0")
    h("v_lshlrev_b32 v62, 7, v50")
    h("v_lshl_add_u32 v62, v51, 3, v62")
    h("v_and_b32 v59, 15, v0")
    h("v_lshlrev_b32 v63, 15, v59")
    h("v_lshl_add_u32 v63, v55, 5, v63")
    h("v_mul_u32_u24 v48, 7168, v59")
    h("v_lshl_add_u32 v48, v55, 4, v48")
    h("s_mov_b32 s60, 0x00ff00ff")
    h("s_mov_b32 s61, 0x00ff00ff")
    for g8 in range(8):
        h(f"v_mov_b32 v{162+4*g8}, s70")
        h(f"v_mov_b32 v{163+4*g8}, s71")

    def proj(hh, areg, base, nk, breg, dreg, ar):
        for kk in range(nk):
            for nt in range(4):
                for hf in range(2):
                    a = ar + ((kk % 2) * 4 + nt) * 4 + hf * 2
                    hh(f"ds_read_b64_tr_b16 v[{a}:{a+1}], v{areg} offset:{base + (32*kk+4*hf)*128 + nt*32}")
            for nt in range(4):
                hh(f"s_waitcnt lgkmcnt({2*(3-nt)})")
                a = ar + ((kk % 2) * 4 + nt) * 4
                d = dreg + 4 * nt
                c = "0" if kk == 0 else f"v[{d}:{d+3}]"
                hh(f"v_mfma_f32_16x16x32_bf16 v[{d}:{d+3}], v[{a}:{a+3}], v[{breg+4*kk}:{breg+4*kk+3}], {c}")

    def hstamp(k):
        if stamps:
            h("s_memrealtime s[98:99]"); h("s_waitcnt lgkmcnt(0)"); h(f"s_mov_b32 s{72+k}, s98")
    h.wait_tag(("x", 3))
    hstamp(0)
    proj(h, 62, T_WQ, 4, XR, 96, 128)
    h("s_lshl_b32 s86, s91, 18")
    h("s_lshl_b32 s87, s43, 2")
    h("s_add_u32 s86, s86, s87")
    h("s_mov_b64 exec, s[60:61]")
    h("s_nop 1")
    for nt in range(4):
        for hf in range(2):
            g8 = nt * 2 + hf
            h(f"v_mov_b32 v{160+4*g8}, v{96+4*nt+2*hf}")
            h(f"v_mov_b32 v{161+4*g8}, v{97+4*nt+2*hf}")
            h.vm(("qst", g8), f"buffer_store_dwordx4 v[{160+4*g8}:{163+4*g8}], v63, s[12:15], s86 offen offset:{nt*128+hf*16} sc1")
    h("s_mov_b64 exec, -1")
    srd(h, 64, 32, 1792 * 1024)
    h(f"s_mul_i32 s86, s90, {56*1024}")
    h("s_lshl_b32 s93, s89, 7")
    h("s_add_u32 s86, s86, s93")
    tile("wd", 8, T_WD, 53, 64, 86, 8192)
    h("v_bfe_u32 v40, v0, 3, 2")
    h("v_lshlrev_b32 v40, 18, v40")
    h("v_and_b32 v41, 7, v0")
    h("v_lshl_add_u32 v40, v41, 9, v40")
    h("s_bfe_u32 s86, s2, 0x30002")
    h("s_lshr_b32 s93, s2, 5")
    h("s_lshl_b32 s93, s93, 15")
    h("s_lshl_b32 s86, s86, 12")
    h("s_add_u32 s93, s93, s86")
    h("v_and_b32 v43, 3, v0")
    h("v_lshlrev_b32 v43, 10, v43")
    h("v_lshrrev_b32 v44, 2, v0")
    h("v_lshl_add_u32 v43, v44, 6, v43")
    h("s_add_u32 s66, s93, 0x40000")
    h("s_add_u32 s67, s93, 0x80000")
    h("s_add_u32 s68, s93, 0xc0000")
    h.wait_tag(("gu", 15))
    proj(h, 62, T_GU, 4, XR, 112, 128)
    h("v_mov_b32 v36, 1")
    h("s_and_b32 s86, s89, 3")
    h("s_lshr_b32 s92, s89, 2")
    h("s_lshl_b32 s92, s92, 5")
    h("s_add_u32 s86, s86, s92")
    h("s_lshl_b32 s86, s86, 2")
    h("v_mov_b32 v37, s86")
    h("s_cmp_lt_u32 s57, 56")
    h("s_cbranch_scc0 L_nog")
    h("s_mov_b64 exec, s[60:61]")
    for nt in range(4):
        h(f"buffer_store_dwordx4 v[{112+4*nt}:{115+4*nt}], v48, s[12:15], s56 offen offset:{nt*64} sc1")
    h("s_mov_b64 exec, -1")
    h.label("L_nog")
    h.q = []
    h(f"s_mov_b32 s85, {spin}")
    h.label("L_pq")
    h("buffer_load_dwordx4 v[44:47], v40, s[12:15], s93 offen offset:496 sc1")
    h("s_waitcnt vmcnt(0)")
    h("v_cmp_ne_u64 s[86:87], s[70:71], v[46:47]")
    h("s_sub_u32 s85, s85, 1")
    h("s_cmp_eq_u32 s85, 0")
    h("s_cbranch_scc1 L_pq_ok")
    h("s_cmp_eq_u64 s[86:87], 0")
    h("s_cbranch_scc1 L_pq_ok")
    h(f"s_sleep {poll_sleep}")
    h("s_branch L_pq")
    h.label("L_pq_ok")
    hstamp(1)
    for kq, sr in enumerate((93, 66, 67, 68)):
        for c in range(4):
            r = 64 + 16 * kq + 4 * c
            h(f"buffer_load_dwordx4 v[{r}:{r+3}], v43, s[12:15], s{sr} offen offset:{c*16} sc1")
    h("v_lshlrev_b32 v46, 4, v0")
    h(f"v_add_u32 v46, {L_Q}, v46")
    h(f"v_mov_b32 v47, {C_FLAG}")
    h("s_mov_b64 s[64:65], 0")
    h("s_waitcnt vmcnt(0)")
    for gi in range(16):
        r = 64 + 4 * gi
        h(f"v_cmp_ne_u64 s[86:87], s[70:71], v[{r+2}:{r+3}]")
        h("s_or_b64 s[64:65], s[64:65], s[86:87]")
    h("s_cmp_eq_u32 s85, 0")
    h("s_cbranch_scc1 L_pq_ok2")
    h("s_cmp_eq_u64 s[64:65], 0")
    h("s_cbranch_scc0 L_pq")
    h.label("L_pq_ok2")
    for c in range(4):
        for k2 in range(2):
            r = 64 + 4 * c + k2
            h(f"v_add_f32 v{r}, v{r}, v{r+16}")
            h(f"v_add_f32 v{r+32}, v{r+32}, v{r+48}")
    for c in range(4):
        for k2 in range(2):
            r = 64 + 4 * c + k2
            h(f"v_add_f32 v{r}, v{r}, v{r+32}")
    for c in range(4):
        h(f"v_cvt_pk_bf16_f32 v{14+c}, v{64+4*c}, v{65+4*c}")
    h("ds_write_b128 v46, v[14:17]")
    h("s_waitcnt lgkmcnt(0)")
    h("ds_write_b32 v47, v36")
    if stamps:
        h("s_memrealtime s[94:95]")
    h("s_mov_b64 exec, 1")
    h("buffer_atomic_add v36, v37, s[76:79], 0 offen")
    h("s_mov_b64 exec, -1")
    srd(h, 64, 24, 4 << 20)
    h("s_lshl_b32 s86, s90, 17")
    h("s_lshl_b32 s93, s89, 7")
    h("s_add_u32 s86, s86, s93")
    tile("wo", 16, T_WO, 53, 64, 86, 8192)
    h("s_mov_b32 s88, 0xffff0000")
    h(f"s_mov_b32 s87, {LOG2E}")
    for c in range(4):
        h(f"v_lshlrev_b32 v{208+2*c}, 16, v{200+c}"); h(f"v_and_b32 v{209+2*c}, s88, v{200+c}")
        h(f"v_lshlrev_b32 v{216+2*c}, 16, v{204+c}"); h(f"v_and_b32 v{217+2*c}, s88, v{204+c}")
    for c in range(8):
        h(f"v_mul_f32 v{208+c}, v{208+c}, v{216+c}")
    for c in range(4):
        h(f"v_cvt_pk_bf16_f32 v{216+c}, v{208+2*c}, v{209+2*c}")
        h(f"v_lshlrev_b32 v{208+2*c}, 16, v{216+c}"); h(f"v_and_b32 v{209+2*c}, s88, v{216+c}")
    for c in range(1, 8):
        h(f"v_add_f32 v208, v208, v{208+c}")
    h("s_nop 1")
    h("v_add_f32_dpp v208, v208, v208 quad_perm:[1,0,3,2] row_mask:0xf bank_mask:0xf")
    h("s_nop 1")
    h("v_add_f32_dpp v208, v208, v208 quad_perm:[2,3,0,1] row_mask:0xf bank_mask:0xf")

    def allred_h(op, r, t):
        h("s_nop 1")
        h(f"{op}_dpp v{r}, v{r}, v{r} row_ror:4 row_mask:0xf bank_mask:0xf")
        h("s_nop 1")
        h(f"{op}_dpp v{r}, v{r}, v{r} row_ror:8 row_mask:0xf bank_mask:0xf")
        h(f"v_mov_b32 v{t}, v{r}")
        h("s_nop 1")
        h(f"v_permlane16_swap_b32 v{r}, v{t}")
        h(f"{op} v{r}, v{r}, v{t}")
        h(f"v_mov_b32 v{t}, v{r}")
        h("s_nop 1")
        h(f"v_permlane32_swap_b32 v{r}, v{t}")
        h(f"{op} v{r}, v{r}, v{t}")
    allred_h("v_add_f32", 208, 209)
    h("v_cvt_pk_bf16_f32 v208, v208, v208")
    h("v_and_b32 v208, s88, v208")
    h("v_mul_f32 v208, s87, v208")
    h("v_sub_f32 v208, 0, v208")
    h("v_exp_f32 v208, v208")
    h("s_nop 0")
    h("v_add_f32 v208, 1.0, v208")
    h("v_rcp_f32 v208, v208")
    h("s_nop 0")
    h("v_cvt_pk_bf16_f32 v208, v208, v208")
    h("v_and_b32 v208, s88, v208")
    h(f"v_mov_b32 v209, {C_GATE}")
    h("ds_write_b32 v209, v208")
    if stamps:
        h("s_waitcnt lgkmcnt(0)")
        h("s_mov_b32 s93, s94")
        h("s_memrealtime s[94:95]")
        h("s_waitcnt lgkmcnt(0)")
        h("s_mov_b32 s95, s94")
        h("s_mov_b32 s94, s93")
    h("s_branch L_streamA")

    h.label("L_glu2")
    srd(h, 76, 38, 256)
    h("v_and_b32 v50, 3, v0")
    h("v_bfe_u32 v51, v0, 2, 1")
    h("v_lshl_add_u32 v50, v51, 5, v50")
    h("v_lshlrev_b32 v50, 2, v50")
    h("v_lshrrev_b32 v55, 4, v0")
    h("v_and_b32 v59, 15, v0")
    h("v_mul_u32_u24 v52, 7168, v59")
    h("v_lshl_add_u32 v52, v55, 5, v52")
    h("v_lshlrev_b32 v53, 17, v59")
    h("v_lshl_add_u32 v53, v55, 4, v53")
    h("v_bfe_u32 v54, v0, 2, 2")
    h("v_lshl_add_u32 v54, v55, 3, v54")
    h("v_and_b32 v56, 3, v0")
    h("v_lshlrev_b32 v54, 7, v54")
    h("v_lshl_add_u32 v54, v56, 3, v54")
    h(f"v_add_u32 v54, {T_WD}, v54")
    h("s_mul_i32 s64, s90, 224")
    h(f"s_add_u32 s64, s64, {WS_G}")
    h(f"s_add_u32 s65, s64, {114688}")
    h(f"s_add_u32 s66, s64, {2*114688}")
    h(f"s_add_u32 s67, s64, {3*114688}")
    h(f"s_mov_b32 s85, {spin}")
    h.label("L_ph")
    h("buffer_load_dword v57, v50, s[76:79], 0 offen sc1")
    h("s_waitcnt vmcnt(0)")
    h("v_cmp_gt_u32 s[86:87], 32, v57")
    h("s_sub_u32 s85, s85, 1")
    h("s_cmp_eq_u32 s85, 0")
    h("s_cbranch_scc1 L_ph_ok")
    h("s_cmp_eq_u64 s[86:87], 0")
    h("s_cbranch_scc1 L_ph_ok")
    h("s_sleep 30")
    h("s_branch L_ph")
    h.label("L_ph_ok")
    hstamp(2)
    GR = 160
    for kq in range(4):
        for kk in range(2):
            r = GR + (kq * 2 + kk) * 8
            h(f"buffer_load_dwordx4 v[{r}:{r+3}], v52, s[12:15], s{64+kq} offen offset:{kk*128} sc1")
            h(f"buffer_load_dwordx4 v[{r+4}:{r+7}], v52, s[12:15], s{64+kq} offen offset:{kk*128+16} sc1")
    h("s_cmp_lg_u32 s2, 0")
    h("s_cbranch_scc1 L_noep")
    h("v_mov_b32 v56, s70"); h("v_mov_b32 v57, s71"); h(f"v_mov_b32 v58, {WS_EP}")
    h("s_mov_b64 exec, 1")
    h("buffer_store_dwordx2 v[56:57], v58, s[12:15], 0 offen sc1")
    h("s_mov_b64 exec, -1")
    h.label("L_noep")
    h("s_mov_b32 s88, 0xffff0000")
    h(f"s_mov_b32 s87, {LOG2E}")
    h("s_waitcnt vmcnt(0)")
    A0, A1, A2, A3 = GR, GR + 16, GR + 32, GR + 48
    for c in range(16):
        h(f"v_add_f32 v{A0+c}, v{A0+c}, v{A1+c}")
        h(f"v_add_f32 v{A2+c}, v{A2+c}, v{A3+c}")
    for c in range(16):
        h(f"v_add_f32 v{A0+c}, v{A0+c}, v{A2+c}")
    for c in range(8):
        h(f"v_cvt_pk_bf16_f32 v{A1+c}, v{A0+2*c}, v{A0+1+2*c}")
    h("s_nop 1")
    for c in range(8):
        h(f"v_mov_b32_dpp v{A1+8+c}, v{A1+c} row_ror:8 row_mask:0xf bank_mask:0xf")
    for c in range(8):
        h(f"v_lshlrev_b32 v{A0+2*c}, 16, v{A1+c}"); h(f"v_and_b32 v{A0+1+2*c}, s88, v{A1+c}")
        h(f"v_lshlrev_b32 v{A2+2*c}, 16, v{A1+8+c}"); h(f"v_and_b32 v{A2+1+2*c}, s88, v{A1+8+c}")
    for c in range(16):
        h(f"v_mul_f32 v{A0+c}, s87, v{A0+c}")
        h(f"v_sub_f32 v{A0+c}, 0, v{A0+c}")
        h(f"v_exp_f32 v{A0+c}, v{A0+c}")
    for c in range(16):
        h(f"v_add_f32 v{A0+c}, 1.0, v{A0+c}")
    for c in range(16):
        h(f"v_rcp_f32 v{A0+c}, v{A0+c}")
    h("s_nop 0")
    for c in range(8):
        h(f"v_cvt_pk_bf16_f32 v{A1+c}, v{A0+2*c}, v{A0+1+2*c}")
        h(f"v_lshlrev_b32 v{A0+2*c}, 16, v{A1+c}"); h(f"v_and_b32 v{A0+1+2*c}, s88, v{A1+c}")
    for c in range(16):
        h(f"v_mul_f32 v{A0+c}, v{A0+c}, v{A2+c}")
    for c in range(8):
        h(f"v_cvt_pk_bf16_f32 v{A1+c}, v{A0+2*c}, v{A0+1+2*c}")
    h("s_mov_b32 s92, 0xff00ff00")
    h("s_mov_b32 s93, 0xff00ff00")
    h("s_mov_b64 exec, s[92:93]")
    for c in range(4):
        h(f"v_mov_b32 v{A1+c}, 0")
    h("s_mov_b32 s93, 0xffffff00")
    h("s_mov_b64 exec, s[92:93]")
    for c in range(4):
        h(f"v_mov_b32 v{A1+4+c}, 0")
    h("s_mov_b64 exec, -1")
    h("s_nop 1")
    proj(h, 54, 0, 2, A1, A2, GR + 64)
    h("s_add_u32 s92, s58, 4096")
    h("s_add_u32 s93, s58, 8192")
    h("s_add_u32 s86, s58, 12288")
    h("s_mov_b64 exec, s[60:61]")
    h("s_nop 4")
    for nt, sr in enumerate((58, 92, 93, 86)):
        h(f"buffer_store_dwordx4 v[{A2+4*nt}:{A2+3+4*nt}], v53, s[12:15], s{sr} offen offset:2048 sc1")
    h("s_mov_b64 exec, -1")
    h("s_branch L_glu2_ret")

    src = HEADER_COMMENT
    src += f"; @launch grid=(256,1,1) block=(512,1,1) lds={LDS_TOTAL}\n"
    src += '.amdgcn_target "amdgcn-amd-amdhsa--gfx950"\n.text\n'
    src += f".globl {KN}\n.p2align 8\n.type {KN},@function\n{KN}:\n"
    src += e.text() + "\n" + h.text() + "\nL_done:\n    s_endpgm\n"
    src += f""".section .rodata,"a"
.p2align 6
.amdhsa_kernel {KN}
  .amdhsa_next_free_vgpr 256
  .amdhsa_next_free_sgpr 102
  .amdhsa_accum_offset 256
  .amdhsa_group_segment_fixed_size 0
  .amdhsa_kernarg_size 104
  .amdhsa_user_sgpr_count 2
  .amdhsa_user_sgpr_kernarg_segment_ptr 1
  .amdhsa_system_sgpr_workgroup_id_x 1
.end_amdhsa_kernel
"""
    return src


if __name__ == "__main__":
    import argparse
    ap = argparse.ArgumentParser()
    ap.add_argument("out")
    ap.add_argument("--D", type=int, default=4)
    ap.add_argument("--NB", type=int, default=32)
    ap.add_argument("--LAG", type=int, default=20)
    ap.add_argument("--wnt", default="nt")
    ap.add_argument("--dump", default=None)
    ap.add_argument("--stamps", action="store_true")
    ap.add_argument("--dbgtime", action="store_true")
    a = ap.parse_args()
    open(a.out, "w").write(gen(D=a.D, NB=a.NB, LAG=a.LAG, wnt=a.wnt, dump=a.dump, stamps=a.stamps, dbgtime=a.dbgtime))
```
